```python
import torch

def _softmax(x, axis=-1):
    return torch.softmax(x, dim=axis)
def _gelu(x):
    return torch.nn.functional.gelu(x, approximate="tanh")
def _silu(x):
    return torch.nn.functional.silu(x)
def _sigmoid(x):
    return torch.sigmoid(x)
def _layernorm(x, axis=-1, eps=1e-5):
    m = x.mean(dim=axis, keepdim=True)
    v = x.var(dim=axis, keepdim=True, unbiased=False)
    return (x - m) / torch.sqrt(v + eps)
def _scatter_add(tgt, idx, src, axis=0):
    return tgt.clone().index_add_(axis, idx, src)
def _segment_sum(src, seg, n):
    out = torch.zeros((n,) + src.shape[1:], dtype=src.dtype)
    return out.index_add_(0, seg, src)
def _pad(x, pw):
    flat = tuple(v for pair in reversed(pw) for v in pair)
    return torch.nn.functional.pad(x, flat)

kernel_name = 'concat_heads__gqa_block_cached__gqa_block_cached__near_ridge'

def setup_inputs():

    _w = (lambda a: (lambda t: t.to(torch.bfloat16) if t.is_floating_point() else t)(torch.as_tensor(a)))
    def _A_setup():
        B, Sq, D = 16, 80, 512
        Hq, Hkv, Sk, Dh = 32, 32, 80, 128
        assert Hq % Hkv == 0, (Hq, Hkv)
        return {
            "x": _w((lambda *s: torch.randn(*s, dtype=torch.bfloat16) * 0.8)(B, Sq, D)),
            "k_cache": _w((lambda *s: torch.randn(*s, dtype=torch.bfloat16) * 0.8)(B, Hkv, Sk, Dh)),
            "v_cache": _w((lambda *s: torch.randn(*s, dtype=torch.bfloat16) * 0.05)(B, Hkv, Sk, Dh)),
            "wq": _w((lambda *s: torch.randn(*s, dtype=torch.bfloat16) * 0.8)(D, Hq * Dh) * (D ** -0.5)),
            "wo": _w((lambda *s: torch.randn(*s, dtype=torch.bfloat16) * 0.05)(Hq * Dh, D) * ((Hq * Dh) ** -0.5)),
        }
    _A_in = _A_setup()

    def _B_setup():
        B, Sq, D = 16, 80, 512
        Hq, Hkv, Sk, Dh = 32, 32, 80, 128
        assert Hq % Hkv == 0, (Hq, Hkv)
        return {
            "x": _w((lambda *s: torch.randn(*s, dtype=torch.bfloat16) * 0.8)(B, Sq, D)),
            "k_cache": _w((lambda *s: torch.randn(*s, dtype=torch.bfloat16) * 0.8)(B, Hkv, Sk, Dh)),
            "v_cache": _w((lambda *s: torch.randn(*s, dtype=torch.bfloat16) * 0.05)(B, Hkv, Sk, Dh)),
            "wq": _w((lambda *s: torch.randn(*s, dtype=torch.bfloat16) * 0.8)(D, Hq * Dh) * (D ** -0.5)),
            "wo": _w((lambda *s: torch.randn(*s, dtype=torch.bfloat16) * 0.05)(Hq * Dh, D) * ((Hq * Dh) ** -0.5)),
        }
    _B_in = _B_setup()

    return {
        "A_x": _A_in["x"],
        "A_k_cache": _A_in["k_cache"],
        "A_v_cache": _A_in["v_cache"],
        "A_wq": _A_in["wq"],
        "A_wo": _A_in["wo"],
        "B_x": _B_in["x"],
        "B_k_cache": _B_in["k_cache"],
        "B_v_cache": _B_in["v_cache"],
        "B_wq": _B_in["wq"],
        "B_wo": _B_in["wo"],
    }

def reference(A_x, A_k_cache, A_v_cache, A_wq, A_wo, B_x, B_k_cache, B_v_cache, B_wq, B_wo):
    def _A_ref(x, k_cache, v_cache, wq, wo):
        B, Sq, D = x.shape
        Hq, Dh = 32, 128
        Hkv = k_cache.shape[1]
        rep = Hq // Hkv
        q = (lambda x, *d: x.permute(*d))((x @ wq).reshape(B, Sq, Hq, Dh), 0, 2, 1, 3)
        k = (lambda x, n, axis: torch.repeat_interleave(x, n, dim=axis))(k_cache, rep, axis=1)
        v = (lambda x, n, axis: torch.repeat_interleave(x, n, dim=axis))(v_cache, rep, axis=1)
        scores = torch.einsum("bhqd,bhkd->bhqk", q, k) * (Dh ** -0.5)
        p = _softmax(scores, axis=-1)
        o = torch.einsum("bhqk,bhkd->bhqd", p, v)
        return (lambda x, *d: x.permute(*d))(o, 0, 2, 1, 3).reshape(B, Sq, Hq * Dh) @ wo

    def _B_ref(x, k_cache, v_cache, wq, wo):
        B, Sq, D = x.shape
        Hq, Dh = 32, 128
        Hkv = k_cache.shape[1]
        rep = Hq // Hkv
        q = (lambda x, *d: x.permute(*d))((x @ wq).reshape(B, Sq, Hq, Dh), 0, 2, 1, 3)
        k = (lambda x, n, axis: torch.repeat_interleave(x, n, dim=axis))(k_cache, rep, axis=1)
        v = (lambda x, n, axis: torch.repeat_interleave(x, n, dim=axis))(v_cache, rep, axis=1)
        scores = torch.einsum("bhqd,bhkd->bhqk", q, k) * (Dh ** -0.5)
        p = _softmax(scores, axis=-1)
        o = torch.einsum("bhqk,bhkd->bhqd", p, v)
        return (lambda x, *d: x.permute(*d))(o, 0, 2, 1, 3).reshape(B, Sq, Hq * Dh) @ wo

    a = _A_ref(A_x, A_k_cache, A_v_cache, A_wq, A_wo)
    b = _B_ref(B_x, B_k_cache, B_v_cache, B_wq, B_wo)
    return torch.concatenate([a, b], axis=-1)
```

```python
import re

def regs(spec):
    spec = spec.strip()
    if spec.startswith('-'): spec = spec[1:]
    m = re.fullmatch(r'([vas])\[(\d+):(\d+)\]', spec)
    if m: return [f"{m.group(1)}{i}" for i in range(int(m.group(2)), int(m.group(3)) + 1)]
    m = re.fullmatch(r'([vas])(\d+)', spec)
    if m: return [spec]
    if spec in ('vcc', 'exec', 'm0', 'scc'): return [spec]
    return []

def R(kind, base, n=1):
    return f"{kind}{base}" if n == 1 else f"{kind}[{base}:{base+n-1}]"

class I:
    __slots__ = ('text', 'cls', 'rd', 'wr', 'srcc', 'tag', 'cnt', 'sub', 'nstates')
    def __init__(self, text, cls, rd=(), wr=(), srcc=(), tag=None, cnt=None, sub=None, nstates=1):
        self.text = text; self.cls = cls; self.rd = set(rd); self.wr = set(wr); self.srcc = tuple(srcc)
        self.tag = tag; self.cnt = cnt; self.sub = sub; self.nstates = nstates

TRANS = ('v_exp_f32', 'v_rcp_f32', 'v_log_f32', 'v_rsq_f32', 'v_sqrt_f32')

def valu(op, dst, *srcs, extra=''):
    rd = []
    for s in srcs: rd += regs(s)
    wr = regs(dst)
    sub = None
    if op in TRANS: sub = 'trans'
    if op.startswith('v_permlane'):
        sub = 'permlane'; rd += wr; wr = wr + regs(srcs[0])
    if op.startswith('v_readfirstlane') or op.startswith('v_readlane'): sub = 'readlane'
    if op.startswith('v_fmac'): rd += wr
    if op.startswith('v_cndmask') and len(srcs) == 2: rd.append('vcc')
    return I(f"{op} {', '.join([dst] + list(srcs))}{extra}", 'valu', rd, wr, sub=sub)

def mfma(d, a, b, c, shape='16x16x32'):
    rc = regs(c)
    return I(f"v_mfma_f32_{shape}_bf16 {d}, {a}, {b}, {c}", 'mfma', regs(a) + regs(b) + rc, regs(d), srcc=rc)

def salu(op, dst, *srcs):
    rd = []
    for s in srcs: rd += regs(s)
    wr = regs(dst)
    if op.startswith('s_cmp'):
        rd += wr; wr = []
    return I(f"{op} {', '.join([dst] + list(srcs))}", 'salu', rd, wr)

def raw(text, cls='other', rd=(), wr=()):
    return I(text, cls, rd, wr)

def bload(dst, voff, srd, soff, off=0, tag=None, width=None, flags=''):
    n = len(regs(dst))
    op = {1: 'buffer_load_dword', 2: 'buffer_load_dwordx2', 4: 'buffer_load_dwordx4'}[n]
    o = f" offset:{off}" if off else ''
    return I(f"{op} {dst}, {voff}, {srd}, {soff} offen{o}{flags}", 'vmem', regs(voff) + regs(srd) + regs(soff), regs(dst), tag=tag, cnt='vm')

def bload_lds(voff, srd, soff, off=0, tag=None, flags=''):
    o = f" offset:{off}" if off else ''
    return I(f"buffer_load_dwordx4 {voff}, {srd}, {soff} offen{o}{flags} lds", 'vmem', regs(voff) + regs(srd) + regs(soff) + ['m0'], [], tag=tag, cnt='vm', sub='ldsdma')

def bstore(src, voff, srd, soff, off=0, tag=None, flags='', op=None):
    n = len(regs(src))
    op = op or {1: 'buffer_store_dword', 2: 'buffer_store_dwordx2', 4: 'buffer_store_dwordx4'}[n]
    o = f" offset:{off}" if off else ''
    return I(f"{op} {src}, {voff}, {srd}, {soff} offen{o}{flags}", 'vmem', regs(src) + regs(voff) + regs(srd) + regs(soff), [], tag=tag, cnt='vm',
             sub='widestore' if n >= 3 else 'store', srcc=regs(src))

def dsread(dst, addr, off=0, tag=None, op=None):
    n = len(regs(dst))
    op = op or {1: 'ds_read_b32', 2: 'ds_read_b64', 4: 'ds_read_b128'}[n]
    o = f" offset:{off}" if off else ''
    assert off < 65536
    return I(f"{op} {dst}, {addr}{o}", 'ds', regs(addr), regs(dst), tag=tag, cnt='lgkm')

def dswrite(addr, src, off=0, tag=None):
    n = len(regs(src))
    op = {1: 'ds_write_b32', 2: 'ds_write_b64', 4: 'ds_write_b128'}[n]
    o = f" offset:{off}" if off else ''
    assert off < 65536
    return I(f"{op} {addr}, {src}{o}", 'ds', regs(addr) + regs(src), [], tag=tag, cnt='lgkm')

class Wait:
    def __init__(self, *tags, vm0=False, lgkm0=False):
        self.tags = tags; self.vm0 = vm0; self.lgkm0 = lgkm0

class Gen:
    def __init__(self):
        self.out = []
        self.vm = []
        self.lg = []
        self.vm_done = 0
        self.lg_done = 0
        self.hist = []
        self.pending = {}
        self.nnop = 0
        self.check_pending = True
    def label(self, name):
        self.out.append(name + ':')
    def barrier_hist(self):
        self.emit(I('s_nop 7', 'nop', nstates=8)); self.emit(I('s_nop 3', 'nop', nstates=4))
    def need(self, ins):
        need = 0
        dist = 0
        for p in reversed(self.hist):
            if dist >= 12: break
            req = 0
            if p.cls == 'valu':
                if ins.cls == 'mfma' and (p.wr & ins.rd): req = max(req, 2)
                if ins.cls == 'valu':
                    if p.sub == 'trans' and ins.sub != 'trans' and (p.wr & ins.rd): req = max(req, 1)
                    if p.sub == 'trans' and ins.sub == 'trans' and (p.wr & ins.rd): req = max(req, 1)
                    if ins.sub == 'permlane' and (p.wr & ins.rd): req = max(req, 2)
                    if ins.sub == 'readlane' and (p.wr & ins.rd): req = max(req, 1)
                    sw = {r for r in p.wr if r[0] == 's' or r == 'vcc'}
                    if sw & ins.rd: req = max(req, 2)
                    if 'exec' in p.wr: req = max(req, 4)
                if ins.cls == 'vmem':
                    sw = {r for r in p.wr if r[0] == 's'}
                    if sw & ins.rd: req = max(req, 5)
                if ins.cls == 'salu':
                    sw = {r for r in p.wr if r[0] == 's' or r == 'vcc'}
                    if sw & ins.rd: req = max(req, 2)
            elif p.cls == 'mfma':
                if ins.cls == 'mfma':
                    ab = ins.rd - set(ins.srcc)
                    if p.wr & ab: req = max(req, 8)
                    if p.wr & set(ins.srcc):
                        if set(ins.srcc) != p.wr: req = max(req, 6)
                    elif p.wr & ins.wr: req = max(req, 6)
                elif ins.cls in ('valu', 'vmem', 'ds'):
                    if p.wr & (ins.rd | ins.wr): req = max(req, 8)
                    if ins.cls == 'valu' and (set(p.srcc) & ins.wr): req = max(req, 3)
                    if ins.cls in ('vmem', 'ds') and (set(p.rd) & ins.wr): req = max(req, 0)
            elif p.cls == 'salu':
                if 'm0' in p.wr and 'm0' in ins.rd: req = max(req, 1)
            elif p.cls == 'vmem' and p.sub == 'widestore':
                if set(p.srcc) & ins.wr: req = max(req, 2)
            if req - dist > need: need = req - dist
            dist += p.nstates
        return need
    def emit(self, ins):
        if isinstance(ins, (list, tuple)):
            for x in ins: self.emit(x)
            return
        if isinstance(ins, Wait):
            self.wait(ins); return
        if isinstance(ins, str):
            ins = raw(ins)
        if self.check_pending:
            for r in (ins.rd | ins.wr):
                if r in self.pending:
                    cnt, idx = self.pending[r]
                    done = self.vm_done if cnt == 'vm' else self.lg_done
                    if idx >= done:
                        raise RuntimeError(f"register {r} used by '{ins.text}' while load outstanding ({cnt} #{idx})")
                    del self.pending[r]
        n = self.need(ins)
        while n > 0:
            k = min(n, 16)
            nop = I(f"s_nop {k-1}", 'nop', nstates=k)
            self.out.append(nop); self.hist.append(nop); self.nnop += 1
            n -= k
        self.out.append(ins); self.hist.append(ins)
        if len(self.hist) > 32: self.hist = self.hist[-16:]
        if ins.cnt == 'vm':
            self.vm.append(ins.tag)
            for r in ins.wr: self.pending[r] = ('vm', len(self.vm) - 1)
        elif ins.cnt == 'lgkm':
            self.lg.append(ins.tag)
            for r in ins.wr: self.pending[r] = ('lgkm', len(self.lg) - 1)
    def wait(self, w):
        parts = []
        vi = max([i for i, t in enumerate(self.vm) if t in w.tags], default=-1)
        li = max([i for i, t in enumerate(self.lg) if t in w.tags], default=-1)
        if w.vm0: vi = len(self.vm) - 1
        if w.lgkm0: li = len(self.lg) - 1
        for t in w.tags:
            assert t in self.vm or t in self.lg, f"unknown tag {t}"
        if vi >= self.vm_done or w.vm0:
            n = min(len(self.vm) - 1 - vi, 63)
            parts.append(f"vmcnt({n})"); self.vm_done = max(self.vm_done, len(self.vm) - n)
        if li >= self.lg_done or w.lgkm0:
            n = min(len(self.lg) - 1 - li, 15)
            parts.append(f"lgkmcnt({n})"); self.lg_done = max(self.lg_done, len(self.lg) - n)
        if parts:
            ins = I("s_waitcnt " + " ".join(parts), 'wait')
            self.out.append(ins); self.hist.append(ins)
    def text(self):
        return "\n".join((x if isinstance(x, str) else "    " + x.text) for x in self.out) + "\n"

def interleave(main, fill, per=2, start=0):
    out = []; fill = list(fill)
    for k, m in enumerate(main):
        out.append(m)
        if k >= start:
            for _ in range(per):
                if fill: out.append(fill.pop(0))
    out += fill
    return out
```

```python
import sys, math
from fw import *

NAME = "concat_heads__gqa_block_cached__gqa_block_cached__near_ridge"
STAMP = '--stamp' in sys.argv
out_path = sys.argv[1]

g = Gen()
E = g.emit
sX, sK, sV, sWQ, sWO, sWS, sOUT, sDBG = 's[4:7]', 's[8:11]', 's[12:15]', 's[16:19]', 's[20:23]', 's[24:27]', 's[28:31]', 's[32:35]'
sP, sB, sHG, sW, sH, sROT = 's36', 's37', 's38', 's39', 's40', 's41'
sSEL = ['s42', 's43']; sC = 's44'
sKV = 's45'
sXB = 's46'
sT0, sT1, sT2, sT3 = 's47', 's48', 's49', 's50'
sWoff = 's51'
sWbase = 's52'
sVL = 's53'
vL16, vL16b, vXs, vKs, vVs0, vVs1, vVtr = 'v1', 'v2', 'v3', 'v4', 'v5', 'v6', 'v7'
vW = [f'v{8+j}' for j in range(8)]
RING, RN = 16, 3
PB = 112
ACC = 120
TMP = 248
def acc(i, t):
    return R('v', ACC + (t * 8 + i) * 4, 4) if t < 4 else R('a', i * 4, 4)
def accr(i, t, r):
    return f'v{ACC + (t*8+i)*4 + r}' if t < 4 else f'a{i*4+r}'
XF = 32
KF = 72
VF = 152
XLDS = 0; VLDS = 81920

stamp_n = [0]
def stamp():
    if not STAMP: return
    k = stamp_n[0]; stamp_n[0] += 1
    E(raw(f"s_memrealtime s[{84+0}:{85}]")); E(raw("s_waitcnt lgkmcnt(0)"))
    g.lg_done = len(g.lg)
    E(raw(f"s_mov_b32 s{64+2*k}, s84")); E(raw(f"s_mov_b32 s{65+2*k}, s85"))

E(raw("s_cmp_ge_u32 s2, 256")); E(raw("s_cbranch_scc1 L_end"))
if STAMP: E(raw("s_memrealtime s[90:91]"))
E(raw("s_load_dwordx16 s[64:79], s[0:1], 0"))
E(raw("s_load_dwordx8 s[80:87], s[0:1], 64"))
E(raw("s_load_dwordx2 s[88:89], s[0:1], 96"))
E(salu('s_and_b32', sP, 's2', '1'))
E(salu('s_lshr_b32', sT0, 's2', '1')); E(salu('s_and_b32', sT0, sT0, '3'))
E(salu('s_lshr_b32', sT1, 's2', '3'))
E(salu('s_and_b32', sT2, sT1, '1'))
E(salu('s_lshl_b32', sHG, sT0, '1')); E(salu('s_add_u32', sHG, sHG, sT2))
E(salu('s_lshr_b32', sB, sT1, '1'))
E(valu('v_lshrrev_b32', 'v8', '6', 'v0'))
E(valu('v_and_b32', 'v0', '63', 'v0'))
E(valu('v_readfirstlane_b32', sW, 'v8'))
E(valu('v_lshrrev_b32', 'v9', '4', 'v0'))
E(valu('v_and_b32', 'v10', '15', 'v0'))
E(valu('v_lshlrev_b32', vL16, '4', 'v0'))
E(valu('v_add_u32', vL16b, '40960', vL16))
E(valu('v_lshlrev_b32', 'v11', '4', 'v9'))
E(valu('v_lshl_add_u32', vXs, 'v10', '10', 'v11'))
E(valu('v_lshl_add_u32', vKs, 'v10', '8', 'v11'))
E(valu('v_lshrrev_b32', 'v12', '1', 'v10'))
E(valu('v_xor_b32', 'v12', 'v12', 'v9'))
E(valu('v_lshlrev_b32', 'v12', '5', 'v12'))
E(valu('v_and_b32', 'v13', '1', 'v10'))
E(valu('v_lshl_add_u32', 'v12', 'v13', '4', 'v12'))
E(valu('v_lshl_add_u32', vVs0, 'v9', '8', 'v12'))
E(valu('v_xor_b32', vVs1, '128', vVs0))
E(valu('v_lshrrev_b32', 'v12', '2', 'v0'))
E(valu('v_and_b32', 'v13', '7', 'v12'))
E(valu('v_lshlrev_b32', 'v13', '5', 'v13'))
E(valu('v_lshl_add_u32', 'v13', 'v12', '8', 'v13'))
E(valu('v_and_b32', 'v12', '3', 'v0'))
E(valu('v_lshl_add_u32', vVtr, 'v12', '3', 'v13'))
vCol, vG = f'v{TMP+7}', f'v{TMP+6}'
E(valu('v_and_b32', 'v12', '3', 'v10'))
E(valu('v_lshrrev_b32', 'v13', '2', 'v10'))
E(valu('v_lshlrev_b32', 'v13', '4', 'v13'))
E(valu('v_lshl_add_u32', vCol, 'v12', '6', 'v13'))
E(valu('v_mov_b32', vG, 'v9'))
E(valu('v_lshl_add_u32', vW[0], vG, '16', vCol))
for j in range(1, 8): E(valu('v_add_u32', vW[j], str(8192 * j), vW[0]))
E(salu('s_lshl_b32', sH, sHG, '2')); E(salu('s_add_u32', sH, sH, sW))
E(salu('s_mov_b32', sROT, sB))
E(salu('s_mov_b32', sSEL[0], '0x05040100')); E(salu('s_mov_b32', sSEL[1], '0x07060302'))
import struct
cval = (128 ** -0.5) * math.log2(math.e)
E(salu('s_mov_b32', sC, hex(struct.unpack('<I', struct.pack('<f', cval))[0])))
E(salu('s_lshl_b32', sKV, sB, '5')); E(salu('s_add_u32', sKV, sKV, sH)); E(salu('s_mul_i32', sKV, sKV, '20480'))
E(salu('s_mul_i32', sXB, sB, '81920'))
E(salu('s_mul_i32', sVL, sW, '20480')); E(salu('s_add_u32', sVL, sVL, str(VLDS)))
E(valu('v_add_u32', vVtr, sVL, vVtr))
E(raw("s_waitcnt lgkmcnt(0)"))
E(raw(f"s_cmp_eq_u32 {sP}, 0"))
def srd(base, pa, pb, size):
    E(raw(f"s_cselect_b32 s{base}, s{pa}, s{pb}")); E(raw(f"s_cselect_b32 s{base+1}, s{pa+1}, s{pb+1}"))
    E(raw(f"s_mov_b32 s{base+2}, {size}")); E(raw(f"s_mov_b32 s{base+3}, 0x00020000"))
srd(4, 64, 74, 1310720); srd(16, 70, 80, 4194304); srd(8, 66, 76, 10485760); srd(12, 68, 78, 10485760); srd(20, 72, 82, 4194304)
srd(24, 88, 88, 268435456); srd(28, 84, 84, 2621440); srd(32, 86, 86, 256)
if STAMP:
    E(raw("s_mov_b32 s64, s90")); E(raw("s_mov_b32 s65, s91")); stamp_n[0] = 1

def xdma(n):
    L = []
    L.append(salu('s_add_u32', sT0, sW, sROT)); L.append(salu('s_add_u32', sT0, sT0, str(4 * n)))
    L.append(salu('s_and_b32', sT0, sT0, '15')); L.append(salu('s_lshl_b32', sT0, sT0, '6')); L.append(salu('s_add_u32', sT0, sT0, sXB))
    L.append(salu('s_mul_i32', sT1, sW, '5120'))
    for t in range(5):
        L.append(salu('s_add_u32', 'm0', sT1, str(XLDS + 4 * n * 5120 + t * 1024)))
        L.append(salu('s_add_u32', sT2, sT0, str(t * 16384)))
        L.append(bload_lds(vXs, sX, sT2, tag=f'X{n}'))
    return L

def wq_soff(i):
    return [salu('s_add_u32', sWoff, sROT, str(i)), salu('s_and_b32', sWoff, sWoff, '15'), salu('s_lshl_b32', sWoff, sWoff, '18'),
            salu('s_add_u32', sWoff, sWoff, sWbase)]
def wq_load(i, j):
    return bload(R('v', RING + (i % RN) * 32 + j * 4, 4), vW[j], sWQ, sWoff, tag=f'Q{i}')
def wo_soff(i):
    return [salu('s_add_u32', sWoff, sROT, str(i)), salu('s_and_b32', sWoff, sWoff, '15'), salu('s_lshl_b32', sWoff, sWoff, '15'),
            salu('s_add_u32', sWoff, sWoff, sWbase)]
def wo_load(i, j):
    return bload(R('v', RING + (i % RN) * 32 + j * 4, 4), vW[j >> 2], sWO, sWoff, off=(j & 3) * 1024, tag=f'O{i}')

def kload(u, r):
    L = []
    if r == 0: L.append(salu('s_add_u32', sT3, sKV, str(u * 4096)))
    L.append(bload(R('a', KF + (u * 4 + r) * 4, 4), vKs, sK, sT3, off=r * 64, tag='K'))
    return L
def vdma(n):
    L = []
    if n % 4 == 0:
        L.append(salu('s_add_u32', sT3, sKV, str(n * 1024)))
        L.append(salu('s_add_u32', 'm0', sVL, str(n * 1024)))
    L.append(bload_lds(vVs1 if n & 1 else vVs0, sV, sT3, off=(n % 4) * 1024, tag='V'))
    return L

def bfrag_read(ph, i, t):
    base, off = (vL16, i * 5120 + t * 1024) if i < 8 else (vL16b, (i - 8) * 5120 + t * 1024)
    return dsread(R('a', XF + (i % 2) * 20 + t * 4, 4), base, XLDS + off, tag=f'{ph}B{i}')
def perm(i, tile, q):
    lo = RING + (i % RN) * 32 + (2 * q) * 4 + (tile >> 1)
    hi = lo + 4
    return valu('v_perm_b32', f'v{PB + (tile % 2) * 4 + q}', f'v{hi}', f'v{lo}', sSEL[tile % 2])

def gemm(ph, soff_f, load_f, extra, pre_issued, barrier_at=None):
    E(Wait(f'{ph}0'))
    for q in range(4): E(perm(0, 0, q))
    for i in range(16):
        ex = list(extra.get(i, []))
        for tile in range(8):
            fill = [[] for _ in range(5)]
            ni, nt = (i, tile + 1) if tile < 7 else (i + 1, 0)
            if ni < 16:
                if nt == 0: fill[0].append(Wait(f'{ph}{ni}'))
                fill[0] += [perm(ni, nt, 0), perm(ni, nt, 1)]
                fill[1] += [perm(ni, nt, 2), perm(ni, nt, 3)]
            if tile == 7:
                li, j = i + RN, 0
            else:
                li, j = i - 1 + RN, tile + 1
            if pre_issued <= li < 16:
                if j == 0: fill[2] += soff_f(li)
                fill[2].append(load_f(li, j))
            if i + 1 < 16 and tile < 5:
                if tile == 0 and barrier_at == i: fill[3].append(raw('s_barrier'))
                fill[3].append(bfrag_read(ph, i + 1, tile))
            if ex and tile >= 0:
                k = (len(ex) + (7 - tile)) // (8 - tile)
                for _ in range(k): fill[4] += ex.pop(0)
            if tile == 0: E(Wait(f'{ph}B{i}'))
            for t in range(5):
                a_ = acc(tile, t)
                E(mfma(a_, R('v', PB + (tile % 2) * 4, 4), R('a', XF + (i % 2) * 20 + t * 4, 4), '0' if i == 0 else a_))
                E(fill[t])

E(salu('s_lshl_b32', sWbase, sH, '8'))
E(xdma(0))
for i in range(2):
    E(wq_soff(i))
    for j in range(8): E(wq_load(i, j))
E(xdma(1))
E(wq_soff(2))
for j in range(8): E(wq_load(2, j))
E(xdma(2)); E(xdma(3))
E(Wait('X0')); E(raw('s_barrier'))
for t in range(5): E(bfrag_read('Q', 0, t))
stamp()
extra = {}
kl = [kload(u, r) for u in range(5) for r in range(4)]
vl = [vdma(n) for n in range(20)]
allkv = kl + vl
for i in range(1, 15):
    extra[i] = allkv[(i - 1) * 3:(i - 1) * 3 + 3]
gemm('Q', wq_soff, wq_load, extra, 3, barrier_at=3)
stamp()
E(raw('s_barrier'))

E(valu('v_lshl_add_u32', vW[0], vG, '12', vCol))
E(valu('v_add_u32', vW[1], '16384', vW[0]))
E(salu('s_lshl_b32', sWbase, sHG, '19')); E(salu('s_lshl_b32', sT0, sW, '8')); E(salu('s_add_u32', sWbase, sWbase, sT0))
for i in range(2):
    E(wo_soff(i))
    for j in range(8): E(wo_load(i, j))

QF = [80, 96, 120, 136, 152]
SB = [168, 188]
PF = [208, 218, 228, 238, 120]
T = PB
def cq(t):
    L = []
    for r in range(4):
        for m in range(4):
            if t < 4:
                L.append(valu('v_cvt_pk_bf16_f32', f'v{QF[t] + r*4 + m}', accr(2*m, t, r), accr(2*m+1, t, r)))
            else:
                t0, t1 = f'v{T + (m % 2) * 2}', f'v{T + (m % 2) * 2 + 1}'
                L.append(valu('v_accvgpr_read_b32', t0, accr(2*m, t, r)))
                L.append(valu('v_accvgpr_read_b32', t1, accr(2*m+1, t, r)))
                L.append(valu('v_cvt_pk_bf16_f32', f'v{QF[t] + r*4 + m}', t0, t1))
    return L
def qk(t):
    L = []
    for r in range(4):
        for u in range(5):
            d = R('v', SB[t % 2] + u * 4, 4)
            L.append(mfma(d, R('a', KF + (u * 4 + r) * 4, 4), R('v', QF[t] + r * 4, 4), '0' if r == 0 else d))
    return L
def softmax(t):
    s = [f'v{SB[t % 2] + k}' for k in range(20)]
    m, t1, sm, sm2 = f'v{T}', f'v{T+1}', f'v{T+2}', f'v{T+3}'
    L = [valu('v_max3_f32', m, s[0], s[1], s[2]), valu('v_max3_f32', t1, s[3], s[4], s[5])]
    for k in range(6, 18, 4):
        L.append(valu('v_max3_f32', m, m, s[k], s[k+1])); L.append(valu('v_max3_f32', t1, t1, s[k+2], s[k+3]))
    L.append(valu('v_max3_f32', m, m, s[18], s[19]))
    L.append(valu('v_max_f32', m, m, t1))
    for op in ('v_permlane32_swap_b32', 'v_permlane16_swap_b32'):
        L.append(valu('v_mov_b32', t1, m)); L.append(valu(op, m, t1)); L.append(valu('v_max_f32', m, m, t1))
    L.append(valu('v_mul_f32', m, sC, m))
    for k in range(20): L.append(valu('v_fma_f32', s[k], s[k], sC, '-' + m))
    for k in range(20): L.append(valu('v_exp_f32', s[k], s[k]))
    L.append(valu('v_add_f32', sm, s[0], s[1])); L.append(valu('v_add_f32', sm2, s[2], s[3]))
    for k in range(4, 20, 2):
        L.append(valu('v_add_f32', sm, sm, s[k])); L.append(valu('v_add_f32', sm2, sm2, s[k+1]))
    L.append(valu('v_add_f32', sm, sm, sm2))
    for op in ('v_permlane32_swap_b32', 'v_permlane16_swap_b32'):
        L.append(valu('v_mov_b32', sm2, sm)); L.append(valu(op, sm, sm2)); L.append(valu('v_add_f32', sm, sm, sm2))
    L.append(valu('v_rcp_f32', sm, sm))
    for k in range(20): L.append(valu('v_mul_f32', s[k], s[k], sm))
    for k in range(10): L.append(valu('v_cvt_pk_bf16_f32', f'v{PF[t] + k}', s[2*k], s[2*k+1]))
    return L
def weave(a, b):
    out = []; nb = len(b); na = len(a); j = 0
    for k, x in enumerate(a):
        while j < nb and j * na <= k * nb:
            out.append(b[j]); j += 1
        out.append(x)
    out += b[j:]
    return out

for t in range(5): E(cq(t))
E(Wait('K'))
E(qk(0))
for t in range(5):
    E(weave(softmax(t), qk(t + 1) if t < 4 else []))
    if t == 1:
        E(wo_soff(2))
        for j in range(8): E(wo_load(2, j))
stamp()
E(Wait('V'))
OA = [130, 170]
OA = [130, 168]
def oacc(y, t, ii):
    if y % 2 == 0: return 130 + t * 8 + ii * 4
    if t < 4: return 170 + t * 8 + ii * 4
    return 112 + ii * 4
vTa = [f'v{TMP}', f'v{TMP+1}']
def vreads(y):
    L = []
    for ii in range(2):
        i = 2 * y + ii
        L.append(valu('v_xor_b32', vTa[ii], str(i * 32), vVtr))
        for u in range(5):
            L.append(dsread(R('a', VF + i * 10 + u * 2, 2), vTa[ii], u * 4096, tag=f'VF{y}', op='ds_read_b64_tr_b16'))
    return L
def pv(y):
    L = []
    for z in range(3):
        for t in range(5):
            for ii in range(2):
                i = 2 * y + ii
                d = R('v', oacc(y, t, ii), 4)
                if z < 2:
                    L.append(mfma(d, R('a', VF + i * 10 + z * 4, 4), R('v', PF[t] + z * 4, 4), '0' if z == 0 else d))
                else:
                    L.append(mfma(d, R('a', VF + i * 10 + 8, 2), R('v', PF[t] + 8, 2), d, shape='16x16x16'))
    return L
vOw = f'v{TMP+2}'
def owrite(y):
    L = [salu('s_lshl_b32', sT0, sW, '2'), salu('s_add_u32', sT0, sT0, str(y + 16)), salu('s_sub_u32', sT0, sT0, sROT),
         salu('s_and_b32', sT0, sT0, '15'), salu('s_mul_i32', sT0, sT0, '5120'), valu('v_add_u32', vOw, sT0, vL16)]
    for t in range(5):
        b0 = oacc(y, t, 0)
        for k in range(4): L.append(valu('v_cvt_pk_bf16_f32', f'v{b0+k}', f'v{b0+2*k}', f'v{b0+2*k+1}'))
        L.append(dswrite(vOw, R('v', b0, 4), XLDS + t * 1024, tag='OW'))
    return L
E(vreads(0)); E(Wait('VF0'));
for y in range(4):
    fill = []
    if y < 3: fill += vreads(y + 1)
    if y > 0: fill += owrite(y - 1)
    E(interleave(pv(y), fill, per=2, start=2 if y else 0))
    if y < 3: E(Wait(f'VF{y+1}'))
E(owrite(3))
E(Wait('OW')); E(raw('s_barrier'))
stamp()
for t in range(5): E(bfrag_read('O', 0, t))
gemm('O', wo_soff, wo_load, {}, 3)
stamp()
E(salu('s_lshl_b32', sT0, sP, '4')); E(salu('s_add_u32', sT0, sT0, sB)); E(salu('s_lshl_b32', sT0, sT0, '3')); E(salu('s_add_u32', sT0, sT0, sHG))
E(salu('s_mul_i32', sT0, sT0, '81920')); E(salu('s_mul_i32', sT1, sW, '20480')); E(salu('s_add_u32', sT0, sT0, sT1))
PO = 1 << 20
E(salu('s_add_u32', sT0, sT0, str(PO)))
k = 0
for t in range(5):
    E(salu('s_add_u32', sT1, sT0, str(t * 4096)))
    for r in range(4):
        d = RING + (k % 8) * 4; k += 1
        for m in range(4):
            if t < 4:
                E(valu('v_cvt_pk_bf16_f32', f'v{d+m}', accr(2*m, t, r), accr(2*m+1, t, r)))
            else:
                t0, t1 = f'v{T + (m % 2) * 2}', f'v{T + (m % 2) * 2 + 1}'
                E(valu('v_accvgpr_read_b32', t0, accr(2*m, t, r))); E(valu('v_accvgpr_read_b32', t1, accr(2*m+1, t, r)))
                E(valu('v_cvt_pk_bf16_f32', f'v{d+m}', t0, t1))
        E(bstore(R('v', d, 4), vL16, sWS, sT1, off=r * 1024, tag='PS'))
if STAMP:
    E(Wait('PS'))
    stamp()
    E(raw(f"s_cmp_lg_u32 {sW}, 0")); E(raw("s_cbranch_scc1 L_end"))
    E(raw("v_cmp_eq_u32 vcc, 0, v0")); E(raw("s_and_saveexec_b64 s[86:87], vcc"))
    E(raw("s_lshl_b32 s84, s2, 6")); E(raw("v_mov_b32 v1, s84"))
    for k in range(stamp_n[0]):
        E(raw(f"v_mov_b32 v2, s{64+2*k}")); E(raw(f"v_mov_b32 v3, s{65+2*k}"))
        E(raw(f"buffer_store_dwordx2 v[2:3], v1, s[24:27], 0 offen offset:{k*8}")); E(raw("s_nop 1"))
g.label('L_end')
E(raw('s_endpgm'))
main_text = g.text()
print("stamps", stamp_n[0], "nops", g.nnop, "instrs", len(g.out), file=sys.stderr)

g2 = Gen(); E = g2.emit
E(raw("s_cmp_ge_u32 s2, 640")); E(raw("s_cbranch_scc1 L_end2"))
E(raw("s_load_dwordx2 s[4:5], s[0:1], 80")); E(raw("s_load_dwordx2 s[8:9], s[0:1], 96"))
E(raw("s_mul_i32 s12, s2, 3277")); E(raw("s_lshr_b32 s12, s12, 16"))
E(raw("s_mul_i32 s13, s12, 20")); E(raw("s_sub_u32 s13, s2, s13"))
E(raw("s_mul_i32 s14, s13, 205")); E(raw("s_lshr_b32 s14, s14, 10"))
E(raw("s_mul_i32 s15, s14, 5")); E(raw("s_sub_u32 s15, s13, s15"))
E(valu('v_lshrrev_b32', 'v1', '6', 'v0'))
E(valu('v_and_b32', 'v0', '63', 'v0'))
E(valu('v_lshlrev_b32', 'v2', '4', 'v0'))
E(valu('v_lshl_add_u32', 'v2', 'v1', '10', 'v2'))
E(raw("s_mul_i32 s16, s12, 655360")); E(raw("s_lshl_b32 s17, s13, 12")); E(raw("s_add_u32 s16, s16, s17")); E(raw(f"s_add_u32 s16, s16, {PO}"))
E(raw("s_waitcnt lgkmcnt(0)"))
E(raw("s_mov_b32 s6, 2621440")); E(raw("s_mov_b32 s7, 0x00020000")); E(raw("s_mov_b32 s10, 268435456")); E(raw("s_mov_b32 s11, 0x00020000"))
for hg in range(8):
    E(bload(R('v', 8 + hg * 4, 4), 'v2', 's[8:11]', 's16', tag=f'L{hg}'))
    E(raw("s_add_u32 s16, s16, 81920"))
E(raw("s_and_b32 s18, s12, 15")); E(raw("s_lshr_b32 s19, s12, 4"))
E(raw("s_mul_i32 s18, s18, 80")); E(raw("s_lshl_b32 s20, s15, 4")); E(raw("s_add_u32 s18, s18, s20")); E(raw("s_lshl_b32 s18, s18, 11"))
E(raw("s_lshl_b32 s19, s19, 10")); E(raw("s_add_u32 s18, s18, s19")); E(raw("s_lshl_b32 s19, s14, 8")); E(raw("s_add_u32 s18, s18, s19"))
E(valu('v_and_b32', 'v3', '15', 'v0')); E(valu('v_lshrrev_b32', 'v4', '4', 'v0'))
E(valu('v_lshlrev_b32', 'v3', '11', 'v3')); E(valu('v_lshl_add_u32', 'v3', 'v4', '4', 'v3')); E(valu('v_lshl_add_u32', 'v3', 'v1', '6', 'v3'))
E(raw("s_mov_b32 s21, 0xffff0000"))
for hg in range(8):
    E(Wait(f'L{hg}'))
    for m in range(4):
        src = f'v{8+hg*4+m}'
        if hg == 0:
            E(valu('v_lshlrev_b32', f'v{40+2*m}', '16', src)); E(valu('v_and_b32', f'v{41+2*m}', 's21', src))
        else:
            E(valu('v_lshlrev_b32', 'v5', '16', src)); E(valu('v_and_b32', 'v6', 's21', src))
            E(valu('v_add_f32', f'v{40+2*m}', f'v{40+2*m}', 'v5')); E(valu('v_add_f32', f'v{41+2*m}', f'v{41+2*m}', 'v6'))
for m in range(4): E(valu('v_cvt_pk_bf16_f32', f'v{48+m}', f'v{40+2*m}', f'v{41+2*m}'))
E(bstore('v[48:51]', 'v3', 's[4:7]', 's18'))
g2.label('L_end2'); E(raw('s_endpgm'))

def kd(name, v, s, a):
    return f""".p2align 6
.amdhsa_kernel {name}
  .amdhsa_next_free_vgpr {v}
  .amdhsa_next_free_sgpr {s}
  .amdhsa_accum_offset {a}
  .amdhsa_group_segment_fixed_size 0
  .amdhsa_kernarg_size 104
  .amdhsa_user_sgpr_count 2
  .amdhsa_user_sgpr_kernarg_segment_ptr 1
  .amdhsa_system_sgpr_workgroup_id_x 1
.end_amdhsa_kernel
"""
K1 = NAME + "_kernel"; K2 = "reduce_kernel"
txt = f"""; generated by gen1.py
; @launch kernel={K1} grid=(256,1,1) block=(256,1,1) lds=163840
; @launch kernel={K2} grid=(640,1,1) block=(256,1,1) lds=0
.amdgcn_target "amdgcn-amd-amdhsa--gfx950"
.text
.globl {K1}
.p2align 8
.type {K1},@function
{K1}:
{main_text}
.globl {K2}
.p2align 8
.type {K2},@function
{K2}:
{g2.text()}
.section .rodata,"a"
{kd(K1, 256+232, 96, 256)}{kd(K2, 52, 32, 52)}"""
open(out_path, 'w').write(txt)
```

```python
import re

def regs(spec):
    spec = spec.strip()
    if spec.startswith('-'): spec = spec[1:]
    m = re.fullmatch(r'([vas])\[(\d+):(\d+)\]', spec)
    if m: return [f"{m.group(1)}{i}" for i in range(int(m.group(2)), int(m.group(3)) + 1)]
    m = re.fullmatch(r'([vas])(\d+)', spec)
    if m: return [spec]
    if spec in ('vcc', 'exec', 'm0', 'scc'): return [spec]
    return []

def R(kind, base, n=1):
    return f"{kind}{base}" if n == 1 else f"{kind}[{base}:{base+n-1}]"

class I:
    __slots__ = ('text', 'cls', 'rd', 'wr', 'srcc', 'tag', 'cnt', 'sub', 'nstates')
    def __init__(self, text, cls, rd=(), wr=(), srcc=(), tag=None, cnt=None, sub=None, nstates=1):
        self.text = text; self.cls = cls; self.rd = set(rd); self.wr = set(wr); self.srcc = tuple(srcc)
        self.tag = tag; self.cnt = cnt; self.sub = sub; self.nstates = nstates

TRANS = ('v_exp_f32', 'v_rcp_f32', 'v_log_f32', 'v_rsq_f32', 'v_sqrt_f32')

def valu(op, dst, *srcs, extra=''):
    rd = []
    for s in srcs: rd += regs(s)
    wr = regs(dst)
    sub = None
    if op in TRANS: sub = 'trans'
    if op.startswith('v_permlane'):
        sub = 'permlane'; rd += wr; wr = wr + regs(srcs[0])
    if op.startswith('v_readfirstlane') or op.startswith('v_readlane'): sub = 'readlane'
    if op.startswith('v_fmac'): rd += wr
    if op.startswith('v_cndmask') and len(srcs) == 2: rd.append('vcc')
    return I(f"{op} {', '.join([dst] + list(srcs))}{extra}", 'valu', rd, wr, sub=sub)

def mfma(d, a, b, c, shape='16x16x32'):
    rc = regs(c)
    return I(f"v_mfma_f32_{shape}_bf16 {d}, {a}, {b}, {c}", 'mfma', regs(a) + regs(b) + rc, regs(d), srcc=rc)

def salu(op, dst, *srcs):
    rd = []
    for s in srcs: rd += regs(s)
    wr = regs(dst)
    if op.startswith('s_cmp'):
        rd += wr; wr = []
    return I(f"{op} {', '.join([dst] + list(srcs))}", 'salu', rd, wr)

def raw(text, cls='other', rd=(), wr=()):
    return I(text, cls, rd, wr)

def bload(dst, voff, srd, soff, off=0, tag=None, width=None, flags=''):
    n = len(regs(dst))
    op = {1: 'buffer_load_dword', 2: 'buffer_load_dwordx2', 4: 'buffer_load_dwordx4'}[n]
    o = f" offset:{off}" if off else ''
    return I(f"{op} {dst}, {voff}, {srd}, {soff} offen{o}{flags}", 'vmem', regs(voff) + regs(srd) + regs(soff), regs(dst), tag=tag, cnt='vm')

def bload_lds(voff, srd, soff, off=0, tag=None, flags=''):
    o = f" offset:{off}" if off else ''
    return I(f"buffer_load_dwordx4 {voff}, {srd}, {soff} offen{o}{flags} lds", 'vmem', regs(voff) + regs(srd) + regs(soff) + ['m0'], [], tag=tag, cnt='vm', sub='ldsdma')

def bstore(src, voff, srd, soff, off=0, tag=None, flags='', op=None):
    n = len(regs(src))
    op = op or {1: 'buffer_store_dword', 2: 'buffer_store_dwordx2', 4: 'buffer_store_dwordx4'}[n]
    o = f" offset:{off}" if off else ''
    return I(f"{op} {src}, {voff}, {srd}, {soff} offen{o}{flags}", 'vmem', regs(src) + regs(voff) + regs(srd) + regs(soff), [], tag=tag, cnt='vm',
             sub='widestore' if n >= 3 else 'store', srcc=regs(src))

def dsread(dst, addr, off=0, tag=None, op=None):
    n = len(regs(dst))
    op = op or {1: 'ds_read_b32', 2: 'ds_read_b64', 4: 'ds_read_b128'}[n]
    o = f" offset:{off}" if off else ''
    assert off < 65536
    return I(f"{op} {dst}, {addr}{o}", 'ds', regs(addr), regs(dst), tag=tag, cnt='lgkm')

def dswrite(addr, src, off=0, tag=None):
    n = len(regs(src))
    op = {1: 'ds_write_b32', 2: 'ds_write_b64', 4: 'ds_write_b128'}[n]
    o = f" offset:{off}" if off else ''
    assert off < 65536
    return I(f"{op} {addr}, {src}{o}", 'ds', regs(addr) + regs(src), [], tag=tag, cnt='lgkm')

class Wait:
    def __init__(self, *tags, vm0=False, lgkm0=False):
        self.tags = tags; self.vm0 = vm0; self.lgkm0 = lgkm0

class Gen:
    def __init__(self):
        self.out = []
        self.vm = []
        self.lg = []
        self.vm_done = 0
        self.lg_done = 0
        self.hist = []
        self.pending = {}
        self.nnop = 0
        self.check_pending = True
    def label(self, name):
        self.out.append(name + ':')
    def barrier_hist(self):
        self.emit(I('s_nop 7', 'nop', nstates=8)); self.emit(I('s_nop 3', 'nop', nstates=4))
    def need(self, ins):
        need = 0
        dist = 0
        for p in reversed(self.hist):
            if dist >= 12: break
            req = 0
            if p.cls == 'valu':
                if ins.cls == 'mfma' and (p.wr & ins.rd): req = max(req, 2)
                if ins.cls == 'valu':
                    if p.sub == 'trans' and ins.sub != 'trans' and (p.wr & ins.rd): req = max(req, 1)
                    if p.sub == 'trans' and ins.sub == 'trans' and (p.wr & ins.rd): req = max(req, 1)
                    if ins.sub == 'permlane' and (p.wr & ins.rd): req = max(req, 2)
                    if ins.sub == 'readlane' and (p.wr & ins.rd): req = max(req, 1)
                    sw = {r for r in p.wr if r[0] == 's' or r == 'vcc'}
                    if sw & ins.rd: req = max(req, 2)
                    if 'exec' in p.wr: req = max(req, 4)
                if ins.cls == 'vmem':
                    sw = {r for r in p.wr if r[0] == 's'}
                    if sw & ins.rd: req = max(req, 5)
                if ins.cls == 'salu':
                    sw = {r for r in p.wr if r[0] == 's' or r == 'vcc'}
                    if sw & ins.rd: req = max(req, 2)
            elif p.cls == 'mfma':
                if ins.cls == 'mfma':
                    ab = ins.rd - set(ins.srcc)
                    if p.wr & ab: req = max(req, 8)
                    if p.wr & set(ins.srcc):
                        if set(ins.srcc) != p.wr: req = max(req, 6)
                    elif p.wr & ins.wr: req = max(req, 6)
                elif ins.cls in ('valu', 'vmem', 'ds'):
                    if p.wr & (ins.rd | ins.wr): req = max(req, 8)
                    if ins.cls == 'valu' and (set(p.srcc) & ins.wr): req = max(req, 3)
                    if ins.cls in ('vmem', 'ds') and (set(p.rd) & ins.wr): req = max(req, 0)
            elif p.cls == 'salu':
                if 'm0' in p.wr and 'm0' in ins.rd: req = max(req, 1)
            elif p.cls == 'vmem' and p.sub == 'widestore':
                if set(p.srcc) & ins.wr: req = max(req, 2)
            if req - dist > need: need = req - dist
            dist += p.nstates
        return need
    def emit(self, ins):
        if isinstance(ins, (list, tuple)):
            for x in ins: self.emit(x)
            return
        if isinstance(ins, Wait):
            self.wait(ins); return
        if isinstance(ins, str):
            ins = raw(ins)
        if self.check_pending:
            for r in (ins.rd | ins.wr):
                if r in self.pending:
                    cnt, idx = self.pending[r]
                    done = self.vm_done if cnt == 'vm' else self.lg_done
                    if idx >= done:
                        raise RuntimeError(f"register {r} used by '{ins.text}' while load outstanding ({cnt} #{idx})")
                    del self.pending[r]
        n = self.need(ins)
        while n > 0:
            k = min(n, 16)
            nop = I(f"s_nop {k-1}", 'nop', nstates=k)
            self.out.append(nop); self.hist.append(nop); self.nnop += 1
            n -= k
        self.out.append(ins); self.hist.append(ins)
        if len(self.hist) > 32: self.hist = self.hist[-16:]
        if ins.cnt == 'vm':
            self.vm.append(ins.tag)
            for r in ins.wr: self.pending[r] = ('vm', len(self.vm) - 1)
        elif ins.cnt == 'lgkm':
            self.lg.append(ins.tag)
            for r in ins.wr: self.pending[r] = ('lgkm', len(self.lg) - 1)
    def wait(self, w):
        parts = []
        vi = max([i for i, t in enumerate(self.vm) if t in w.tags], default=-1)
        li = max([i for i, t in enumerate(self.lg) if t in w.tags], default=-1)
        if w.vm0: vi = len(self.vm) - 1
        if w.lgkm0: li = len(self.lg) - 1
        for t in w.tags:
            assert t in self.vm or t in self.lg, f"unknown tag {t}"
        if vi >= self.vm_done or w.vm0:
            n = min(len(self.vm) - 1 - vi, 63)
            parts.append(f"vmcnt({n})"); self.vm_done = max(self.vm_done, len(self.vm) - n)
        if li >= self.lg_done or w.lgkm0:
            n = min(len(self.lg) - 1 - li, 15)
            parts.append(f"lgkmcnt({n})"); self.lg_done = max(self.lg_done, len(self.lg) - n)
        if parts:
            ins = I("s_waitcnt " + " ".join(parts), 'wait')
            self.out.append(ins); self.hist.append(ins)
    def text(self):
        return "\n".join((x if isinstance(x, str) else "    " + x.text) for x in self.out) + "\n"

def interleave(main, fill, per=2, start=0):
    out = []; fill = list(fill)
    for k, m in enumerate(main):
        out.append(m)
        if k >= start:
            for _ in range(per):
                if fill: out.append(fill.pop(0))
    out += fill
    return out

import subprocess, tempfile, os
def sizes_of(lines):
    src = '.amdgcn_target "amdgcn-amd-amdhsa--gfx950"\n.text\n' + "\n".join(lines) + "\n"
    with tempfile.TemporaryDirectory() as d:
        open(d + "/a.s", "w").write(src)
        r = subprocess.run(["clang", "-x", "assembler", "-target", "amdgcn-amd-amdhsa", "-mcpu=gfx950", "-c", d + "/a.s", "-o", d + "/a.o"], capture_output=True, text=True)
        if r.returncode: raise RuntimeError(r.stderr[:3000])
        o = subprocess.run(["llvm-objdump", "-d", "--mcpu=gfx950", d + "/a.o"], capture_output=True, text=True).stdout
    sz = []
    for l in o.split("\n"):
        m = re.search(r"//\s*[0-9A-F]{12}:((?: [0-9A-F]{8})+)", l)
        if m: sz.append(4 * len(m.group(1).split()))
    return sz

WIDEN = ('v_add_f32', 'v_mul_f32', 'v_max_f32', 'v_mov_b32', 'v_exp_f32', 'v_rcp_f32', 'v_add_u32', 'v_xor_b32', 'v_and_b32',
         'v_lshlrev_b32', 'v_lshrrev_b32', 'v_sub_f32', 'v_or_b32', 'v_min_u32', 'v_max_u32')
def align8(g, verbose=True):
    lines = [(x if isinstance(x, str) else x.text) for x in g.out]
    sz = sizes_of(lines)
    insts = [x for x in g.out if not isinstance(x, str)]
    assert len(sz) == len(insts), (len(sz), len(insts))
    it = iter(sz)
    out = []; off = 0; cand = None; nw = nn = 0
    for x in g.out:
        if isinstance(x, str):
            out.append(x); continue
        s = next(it)
        if s == 8 and off % 8 == 4:
            if cand is not None:
                op, rest = cand.text.split(' ', 1)
                cand.text = op + '_e64 ' + rest; nw += 1
            else:
                out.append(I('s_nop 0', 'nop')); nn += 1
            off += 4
        if s == 8: cand = None
        elif s == 4 and off % 8 == 0 and x.cls == 'valu' and x.text.split(' ')[0] in WIDEN and not x.text.endswith('_dpp'): cand = x
        out.append(x); off += s
    g.out = out
    if verbose: print(f"align8: widened {nw}, nops {nn}, code bytes {off}")
    return off
```

```python
import sys, math, struct
from fw import *

NAME = "concat_heads__gqa_block_cached__gqa_block_cached__near_ridge"
STAMP = '--stamp' in sys.argv
def opt(name, default):
    for a in sys.argv:
        if a.startswith(f'--{name}='): return int(a.split('=')[1])
    return default
ROTMASK = opt('rotmask', 15)
KSTART = opt('kstart', 0)
KREAD = opt('kread', 8)
VSTART = opt('vstart', 9)
VPER = opt('vper', 1)
PFCODE = opt('pfcode', 1)
out_path = sys.argv[1]

g = Gen()
E = g.emit
sX, sK, sV, sWQ, sWO, sWS, sOUT, sDBG = 's[4:7]', 's[8:11]', 's[12:15]', 's[16:19]', 's[20:23]', 's[24:27]', 's[28:31]', 's[32:35]'
sP, sB, sHG, sW, sH, sROT = 's36', 's37', 's38', 's39', 's40', 's41'
sSEL = ['s42', 's43']; sC = 's44'
sKV = 's45'; sXB = 's46'
sT0, sT1, sT2, sT3 = 's47', 's48', 's49', 's50'
sWoff = 's51'; sWbase = 's52'; sVL = 's53'; sXM = 's54'
sGRP = 's55'; sIN = 's56'; sMASK = 's57'; sCNT = 's58'; sOUTB = 's59'; sPUB = 's60'
vL16, vBF, vBFr, vBc, vXs, vVs0, vVtr = 'v1', 'v2', 'v3', 'v4', 'v5', 'v6', 'v7'
vW = [f'v{8+j}' for j in range(8)]
RING, RN = 16, 3
PB = 112
ACC = 120
TMP = 248
vCol, vG = f'v{TMP+7}', f'v{TMP+6}'
vKs = [f'v{TMP+k}' for k in range(4)]
vVs1 = f'v{TMP+4}'
vKr = f'v{TMP+5}'
def acc(i, t): return R('v', ACC + (t * 8 + i) * 4, 4) if t < 4 else R('a', i * 4, 4)
def accr(i, t, r): return f'v{ACC + (t*8+i)*4 + r}' if t < 4 else f'a{i*4+r}'
XF, KF, VF = 32, 72, 152
XLDS, VLDS = 0, 81920
INBOX = 1 << 20

stamp_n = [0]
STEPS = 'Q' if '--stepsQ' in sys.argv else ('O' if '--stepsO' in sys.argv else None)
def sstamp(ph):
    if STEPS != ph: return
    k = stamp_n[0]; stamp_n[0] += 1
    E(raw(f"s_memtime s[{64+2*k}:{65+2*k}]"))
def stamp():
    if not STAMP or STEPS: return
    k = stamp_n[0]; stamp_n[0] += 1
    E(raw("s_memrealtime s[96:97]")); E(raw("s_memtime s[98:99]")); E(raw("s_waitcnt lgkmcnt(0)"))
    g.lg_done = len(g.lg)
    E(raw(f"s_mov_b32 s{64+2*k}, s96")); E(raw(f"s_mov_b32 s{65+2*k}, s98"))

E(raw("s_cmp_ge_u32 s2, 256")); E(raw("s_cbranch_scc1 L_end"))
if STAMP: E(raw("s_memrealtime s[96:97]")); E(raw("s_memtime s[98:99]"))
E(raw("s_load_dwordx16 s[64:79], s[0:1], 0"))
E(raw("s_load_dwordx8 s[80:87], s[0:1], 64"))
E(raw("s_load_dwordx2 s[88:89], s[0:1], 96"))
if PFCODE:
    E(raw("s_getpc_b64 s[90:91]", wr=['s90', 's91']))
    E(valu('v_lshlrev_b32', 'v8', '7', 'v0'))
    E(valu('v_mov_b32', 'v9', 's91'))
    E(raw("v_add_co_u32 v8, vcc, s90, v8", cls='valu', rd=['s90', 'v8'], wr=['v8', 'vcc']))
    E(raw("v_addc_co_u32 v9, vcc, 0, v9, vcc", cls='valu', rd=['v9', 'vcc'], wr=['v9', 'vcc']))
    E(I("global_load_dword v112, v[8:9], off", 'vmem', ['v8', 'v9'], ['v112'], tag='PF', cnt='vm'))
    E(raw("v_add_co_u32 v8, vcc, 0x8000, v8", cls='valu', rd=['v8'], wr=['v8', 'vcc']))
    E(raw("v_addc_co_u32 v9, vcc, 0, v9, vcc", cls='valu', rd=['v9', 'vcc'], wr=['v9', 'vcc']))
    E(raw("v_cmp_gt_u32 vcc, 96, v0", cls='valu', rd=['v0'], wr=['vcc']))
    E(raw("s_nop 1")); E(raw("s_and_saveexec_b64 s[92:93], vcc")); E(raw("s_cbranch_execz L_pf"))
    E(raw("global_load_dword v113, v[8:9], off"))
    g.label('L_pf')
    E(raw("s_mov_b64 exec, s[92:93]"))
E(salu('s_and_b32', sP, 's2', '1'))
E(salu('s_lshr_b32', sT0, 's2', '1')); E(salu('s_and_b32', sT0, sT0, '3'))
E(salu('s_lshr_b32', sT1, 's2', '3'))
E(salu('s_and_b32', sT2, sT1, '1'))
E(salu('s_lshl_b32', sHG, sT0, '1')); E(salu('s_add_u32', sHG, sHG, sT2))
E(salu('s_lshr_b32', sB, sT1, '1'))
E(valu('v_lshrrev_b32', 'v8', '6', 'v0'))
E(valu('v_and_b32', 'v0', '63', 'v0'))
E(valu('v_readfirstlane_b32', sW, 'v8'))
E(valu('v_lshrrev_b32', vG, '4', 'v0'))
E(valu('v_and_b32', 'v10', '15', 'v0'))
E(valu('v_lshlrev_b32', vL16, '4', 'v0'))
E(valu('v_xor_b32', 'v11', 'v10', vG))
E(valu('v_lshlrev_b32', 'v11', '4', 'v11'))
E(valu('v_lshl_add_u32', vBF, 'v10', '8', 'v11'))
E(salu('s_and_b32', sROT, sB, str(ROTMASK)))
E(salu('s_and_b32', sT0, sROT, '3')); E(salu('s_lshl_b32', sT0, sT0, '6'))
E(valu('v_xor_b32', vBFr, sT0, vBF))
E(valu('v_lshl_add_u32', vXs, vG, '10', 'v11'))
E(salu('s_mul_i32', sT0, sW, str(4096 + 64)))
E(valu('v_xor_b32', vXs, sT0, vXs))
E(valu('v_lshlrev_b32', 'v12', '2', vG))
E(valu('v_xor_b32', 'v12', 'v12', 'v10'))
E(valu('v_lshlrev_b32', 'v12', '4', 'v12'))
E(valu('v_lshl_add_u32', vKs[0], vG, '8', 'v12'))
for v in range(1, 4): E(valu('v_xor_b32', vKs[v], str(v * 16), vKs[0]))
E(valu('v_and_b32', 'v12', '3', 'v10'))
E(valu('v_xor_b32', 'v12', 'v12', vG))
E(valu('v_lshrrev_b32', 'v13', '2', 'v10'))
E(valu('v_lshl_add_u32', 'v12', 'v12', '2', 'v13'))
E(valu('v_lshlrev_b32', 'v12', '4', 'v12'))
E(valu('v_lshl_add_u32', vKr, 'v10', '8', 'v12'))
E(valu('v_lshrrev_b32', 'v12', '1', 'v10'))
E(valu('v_xor_b32', 'v12', 'v12', vG))
E(valu('v_lshlrev_b32', 'v12', '5', 'v12'))
E(valu('v_and_b32', 'v13', '1', 'v10'))
E(valu('v_lshl_add_u32', 'v12', 'v13', '4', 'v12'))
E(valu('v_lshl_add_u32', vVs0, vG, '8', 'v12'))
E(valu('v_xor_b32', vVs1, '128', vVs0))
E(valu('v_lshrrev_b32', 'v12', '2', 'v0'))
E(valu('v_and_b32', 'v13', '7', 'v12'))
E(valu('v_lshlrev_b32', 'v13', '5', 'v13'))
E(valu('v_lshl_add_u32', 'v13', 'v12', '8', 'v13'))
E(valu('v_and_b32', 'v12', '3', 'v0'))
E(valu('v_lshl_add_u32', vVtr, 'v12', '3', 'v13'))
E(valu('v_lshlrev_b32', vCol, '4', 'v10'))
E(valu('v_lshl_add_u32', vW[0], vG, '16', vCol))
for j in range(1, 8): E(valu('v_add_u32', vW[j], str(8192 * j), vW[0]))
E(salu('s_lshl_b32', sH, sHG, '2')); E(salu('s_add_u32', sH, sH, sW))
E(salu('s_mov_b32', sSEL[0], '0x05040100')); E(salu('s_mov_b32', sSEL[1], '0x07060302'))
cval = (128 ** -0.5) * math.log2(math.e)
E(salu('s_mov_b32', sC, hex(struct.unpack('<I', struct.pack('<f', cval))[0])))
E(salu('s_lshl_b32', sKV, sB, '5')); E(salu('s_add_u32', sKV, sKV, sH)); E(salu('s_mul_i32', sKV, sKV, '20480'))
E(salu('s_mul_i32', sXB, sB, '81920'))
E(salu('s_lshr_b32', sT0, sROT, '2')); E(salu('s_lshl_b32', sT0, sT0, '8')); E(salu('s_add_u32', sXB, sXB, sT0))
E(salu('s_lshl_b32', sXM, sW, '10'))
E(salu('s_mul_i32', sVL, sW, '20480')); E(salu('s_add_u32', sVL, sVL, str(VLDS)))
E(valu('v_add_u32', vVtr, sVL, vVtr))
E(valu('v_add_u32', vKr, sVL, vKr))
E(salu('s_lshl_b32', sWbase, sH, '8')); E(salu('s_lshl_b32', sT0, sROT, '18')); E(salu('s_add_u32', sWbase, sWbase, sT0))
E(salu('s_lshl_b32', sGRP, sP, '4')); E(salu('s_add_u32', sGRP, sGRP, sB))
E(raw("s_waitcnt lgkmcnt(0)"))
E(raw(f"s_cmp_eq_u32 {sP}, 0"))
def srd(base, pa, pb, size):
    E(raw(f"s_cselect_b32 s{base}, s{pa}, s{pb}")); E(raw(f"s_cselect_b32 s{base+1}, s{pa+1}, s{pb+1}"))
    E(raw(f"s_mov_b32 s{base+2}, {size}")); E(raw(f"s_mov_b32 s{base+3}, 0x00020000"))
srd(4, 64, 74, 1310720); srd(16, 70, 80, 4194304)

def xdma(n):
    L = [salu('s_xor_b32', sT0, sXB, str(n * 256))]
    for t in range(5):
        L.append(salu('s_add_u32', 'm0', sXM, str(XLDS + n * 20480 + t * 4096)))
        L.append(salu('s_add_u32', sT2, sT0, str(t * 16384)))
        L.append(bload_lds(vXs, sX, sT2, tag=f'X{n}'))
    return L
def wq_soff(i): return [salu('s_xor_b32', sWoff, sWbase, str(i << 18))]
def wq_load(i, j): return bload(R('v', RING + (i % RN) * 32 + j * 4, 4), vW[j], sWQ, sWoff, tag=f'Q{i}')
def wo_soff(i): return [salu('s_xor_b32', sWoff, sWbase, str(i << 15))]
def wo_load(i, j): return bload(R('v', RING + (i % RN) * 32 + j * 4, 4), vW[j >> 2], sWO, sWoff, off=(j & 3) * 1024, tag=f'O{i}')
def kquad(u):
    L = [[salu('s_add_u32', sT3, sKV, str(u * 4096)), salu('s_add_u32', 'm0', sVL, str(u * 4096)), bload_lds(vKs[0], sK, sT3, tag='K')]]
    for v in range(1, 4): L.append([bload_lds(vKs[v], sK, sT3, off=v * 1024, tag='K')])
    return L
def vquad(u):
    L = [[salu('s_add_u32', sT3, sKV, str(u * 4096)), salu('s_add_u32', 'm0', sVL, str(u * 4096)), bload_lds(vVs0, sV, sT3, tag='V')]]
    for v in range(1, 4): L.append([bload_lds(vVs1 if v & 1 else vVs0, sV, sT3, off=v * 1024, tag='V')])
    return L
def kreads():
    L = []
    for r in range(4):
        grp = [valu('v_xor_b32', vKs[r], str(r * 16), vKr)]
        if r == 0: grp = [Wait('K')] + grp
        for u in range(5):
            grp.append(dsread(R('a', KF + (u * 4 + r) * 4, 4), vKs[r], u * 4096, tag='KF'))
            L.append(grp); grp = []
    return L
def baddr(i): return valu('v_xor_b32', vBc, str(XLDS + (i & 3) * 64 + (i >> 2) * 20480), vBFr)
def bfrag(i, t): return R('a', XF + (i % 2) * 20 + t * 4, 4)
def bfrag_read(ph, i, t): return dsread(bfrag(i, t), vBc, t * 4096, tag=f'{ph}B{i}')
def perm(i, tile, q, dst=None):
    lo = RING + (i % RN) * 32 + (2 * q) * 4 + (tile >> 1)
    d = PB + (tile % 2) * 4 + q if dst is None else dst + tile * 4 + q
    return valu('v_perm_b32', f'v{d}', f'v{lo+4}', f'v{lo}', sSEL[tile % 2])

def gemm(ph, soff_f, load_f, extra, pre_issued, barrier_at, tail_fill):
    E(Wait(f'{ph}0'))
    for q in range(4): E(perm(0, 0, q))
    F14 = RING + (13 % RN) * 32
    for i in range(14):
        sstamp(ph)
        ex = list(extra.get(i, []))
        for tile in range(8):
            fill = [[] for _ in range(5)]
            ni, nt = (i, tile + 1) if tile < 7 else (i + 1, 0)
            if ni < 14:
                if nt == 0: fill[0].append(Wait(f'{ph}{ni}'))
                fill[0] += [perm(ni, nt, 0), perm(ni, nt, 1)]
                fill[1] += [perm(ni, nt, 2), perm(ni, nt, 3)]
            li, j = (i + RN, 0) if tile == 7 else (i - 1 + RN, tile + 1)
            if pre_issued <= li < 16:
                if j == 0: fill[2] += soff_f(li)
                fill[2].append(load_f(li, j))
            if tile < 5:
                if tile == 0:
                    if barrier_at == i: fill[3].append(raw('s_barrier'))
                    fill[3].append(baddr(i + 1))
                fill[3].append(bfrag_read(ph, i + 1, tile))
            if ex:
                k = (len(ex) + (7 - tile)) // (8 - tile)
                for _ in range(k): fill[4] += ex.pop(0)
            if i == 13 and tile == 7:
                fill[0] += [Wait(f'{ph}14')] + [perm(14, 0, q, F14) for q in range(2)]
                fill[1] += [perm(14, 0, q, F14) for q in range(2, 4)]
                fill[2] += [perm(14, 1, q, F14) for q in range(2)]
                fill[3] += [perm(14, 1, q, F14) for q in range(2, 4)]
                fill[4] += [perm(14, 2, q, F14) for q in range(2)]
            if tile == 0: E(Wait(f'{ph}B{i}'))
            for t in range(5):
                a_ = acc(tile, t)
                E(mfma(a_, R('v', PB + (tile % 2) * 4, 4), bfrag(i, t), '0' if i == 0 else a_))
                E(fill[t])
    F15 = RING + (14 % RN) * 32
    p14 = [perm(14, 2, q, F14) for q in range(2, 4)] + [perm(14, tl, q, F14) for tl in range(3, 8) for q in range(4)]
    p15 = [Wait(f'{ph}15')] + [perm(15, tl, q, F15) for tl in range(8) for q in range(4)]
    b15 = [baddr(15)] + [bfrag_read(ph, 15, t) for t in range(5)]
    sstamp(ph)
    E(Wait(f'{ph}B14'))
    def M(i, tile, t):
        F = F14 if i == 14 else F15
        return mfma(acc(tile, t), R('v', F + tile * 4, 4), bfrag(i, t), acc(tile, t))
    seq1 = [M(14, tl, t) for tl in range(8) for t in range(3)]
    fill1 = b15[:3] + p14[:2] + b15[3:] + p14[2:] + p15
    E(interleave(seq1, fill1[:48], per=2))
    rest = fill1[48:]
    E(Wait(f'{ph}B15'))
    seq2 = [M(14, tl, 3) for tl in range(8)]
    E(interleave(seq2, rest, per=2))
    order = [('a', 0), ('a', 1), ('b', 4), ('a', 2), ('a', 3), ('a', 4)]
    pend = []
    for kind, t in order:
        seq = [M(15 if kind == 'a' else 14, tl, t) for tl in range(8)]
        E(interleave(seq, pend[:14] , per=2, start=1)); pend = pend[14:]
        if kind == 'a': pend = pend + tail_fill(t)
    E(pend)
    sstamp(ph)

E(xdma(0))
E(wq_soff(0))
for j in range(8): E(wq_load(0, j))
E(raw(f"s_cmp_eq_u32 {sP}, 0"))
srd(8, 66, 76, 10485760); srd(12, 68, 78, 10485760); srd(20, 72, 82, 4194304)
srd(24, 88, 88, 268435456); srd(28, 84, 84, 2621440); srd(32, 86, 86, 256)
if STAMP and not STEPS:
    E(raw("s_mov_b32 s64, s96")); E(raw("s_mov_b32 s65, s98")); stamp_n[0] = 1
E(wq_soff(1))
for j in range(8): E(wq_load(1, j))
E(baddr(0))
E(Wait('X0')); E(raw('s_barrier'))
for t in range(5): E(bfrag_read('Q', 0, t))
E(wq_soff(2))
for j in range(8): E(wq_load(2, j))
stamp()
extra = {i: [] for i in range(14)}
def split(L, n=3):
    return [L[k:k+n] for k in range(0, len(L), n)]
for n in (1, 2, 3):
    x = xdma(n); extra[0] += [x[:4]] + split(x[4:])
for u in range(5): extra[max(KSTART + u, 1)] += kquad(u)
extra[KREAD] += kreads()
vq = [vquad(u) for u in range(5)]
vq[0][0] = [Wait('KF')] + vq[0][0]
vpost = []
for u in range(5):
    st = VSTART + u // VPER
    if st < 14: extra[st] += vq[u]
    else: vpost += vq[u]

QF = [RING + 0, RING + 16, 120, 136, 152]
T = PB
def cq(t):
    L = []
    for r in range(4):
        for m in range(4):
            if t < 4:
                L.append(valu('v_cvt_pk_bf16_f32', f'v{QF[t] + r*4 + m}', accr(2*m, t, r), accr(2*m+1, t, r)))
            else:
                t0, t1 = f'v{T + (m % 2) * 2}', f'v{T + (m % 2) * 2 + 1}'
                L.append(valu('v_accvgpr_read_b32', t0, accr(2*m, t, r)))
                L.append(valu('v_accvgpr_read_b32', t1, accr(2*m+1, t, r)))
                L.append(valu('v_cvt_pk_bf16_f32', f'v{QF[t] + r*4 + m}', t0, t1))
    if t == 0:
        for x in vpost: L += x
    return L
gemm('Q', wq_soff, wq_load, extra, 3, 3, cq)
stamp()
E(raw('s_barrier'))

def wo_load(i, j): return bload(R('v', RING + (i % RN) * 32 + j * 4, 4), vW[j >> 2], sWO, sWoff, off=(j & 3) * 1024, tag=f'O{i}')
wo_pre = [valu('v_lshl_add_u32', vW[0], vG, '12', vCol), valu('v_add_u32', vW[1], '16384', vW[0]),
          salu('s_lshl_b32', sWbase, sHG, '19'), salu('s_lshl_b32', sT0, sW, '8'), salu('s_add_u32', sWbase, sWbase, sT0),
          salu('s_lshl_b32', sT0, sROT, '15'), salu('s_add_u32', sWbase, sWbase, sT0)]
def wo_batch(i): return wo_soff(i) + [wo_load(i, j) for j in range(8)]

vOnes = 'v[10:13]'
clear = [salu('s_lshl_b32', sIN, sGRP, '3'), salu('s_add_u32', sIN, sIN, sHG), salu('s_lshl_b32', sIN, sIN, '2'), salu('s_add_u32', sIN, sIN, sW),
         salu('s_mul_i32', sIN, sIN, '20480'), salu('s_add_u32', sIN, sIN, str(INBOX))]
clear += [valu('v_mov_b32', f'v{10+k}', '-1') for k in range(4)]
for t in range(5):
    clear.append(salu('s_add_u32', sT1, sIN, str(t * 4096)))
    for k in range(4): clear.append(bstore(vOnes, vL16, sWS, sT1, off=k * 1024, tag='CLR', flags=' sc1'))

SB = [168, 188]
PF = [208, 218, 228, 238, 120]
def qk(t):
    L = []
    for r in range(4):
        for u in range(5):
            d = R('v', SB[t % 2] + u * 4, 4)
            L.append(mfma(d, R('a', KF + (u * 4 + r) * 4, 4), R('v', QF[t] + r * 4, 4), '0' if r == 0 else d))
    return L
def softmax(t):
    s = [f'v{SB[t % 2] + k}' for k in range(20)]
    m, t1, sm, sm2 = f'v{T}', f'v{T+1}', f'v{T+2}', f'v{T+3}'
    L = [valu('v_max3_f32', m, s[0], s[1], s[2]), valu('v_max3_f32', t1, s[3], s[4], s[5])]
    for k in range(6, 18, 4):
        L.append(valu('v_max3_f32', m, m, s[k], s[k+1])); L.append(valu('v_max3_f32', t1, t1, s[k+2], s[k+3]))
    L.append(valu('v_max3_f32', m, m, s[18], s[19]))
    L.append(valu('v_max_f32', m, m, t1))
    for op in ('v_permlane32_swap_b32', 'v_permlane16_swap_b32'):
        L.append(valu('v_mov_b32', t1, m)); L.append(valu(op, m, t1)); L.append(valu('v_max_f32', m, m, t1))
    L.append(valu('v_mul_f32', m, sC, m))
    for k in range(20): L.append(valu('v_fma_f32', s[k], s[k], sC, '-' + m))
    for k in range(20): L.append(valu('v_exp_f32', s[k], s[k]))
    L.append(valu('v_add_f32', sm, s[0], s[1])); L.append(valu('v_add_f32', sm2, s[2], s[3]))
    for k in range(4, 20, 2):
        L.append(valu('v_add_f32', sm, sm, s[k])); L.append(valu('v_add_f32', sm2, sm2, s[k+1]))
    L.append(valu('v_add_f32', sm, sm, sm2))
    for op in ('v_permlane32_swap_b32', 'v_permlane16_swap_b32'):
        L.append(valu('v_mov_b32', sm2, sm)); L.append(valu(op, sm, sm2)); L.append(valu('v_add_f32', sm, sm, sm2))
    L.append(valu('v_rcp_f32', sm, sm))
    for k in range(20): L.append(valu('v_mul_f32', s[k], s[k], sm))
    for k in range(10): L.append(valu('v_cvt_pk_bf16_f32', f'v{PF[t] + k}', s[2*k], s[2*k+1]))
    return L
def weave(a, b):
    out = []; nb = len(b); na = len(a); j = 0
    for k, x in enumerate(a):
        while j < nb and j * na <= k * nb:
            out.append(b[j]); j += 1
        out.append(x)
    out += b[j:]
    return out

E(Wait('KF'))
E(interleave(qk(0), wo_pre + wo_batch(1) + wo_batch(2), per=2))
for t in range(5):
    other = qk(t + 1) if t < 4 else []
    if t == 1: other = weave(other, wo_batch(0))
    other = weave(other, clear[:15] if t == 0 else clear[10 + 5 * t: 15 + 5 * t]) if other else clear[10 + 5 * t: 15 + 5 * t]
    E(weave(softmax(t), other))
stamp()
E(Wait('V'))
def oacc(y, t, ii):
    if y % 2 == 0: return 130 + t * 8 + ii * 4
    if t < 4: return 170 + t * 8 + ii * 4
    return 112 + ii * 4
vTa = [f'v{TMP}', f'v{TMP+1}']
def vreads(y):
    L = []
    for ii in range(2):
        i = 2 * y + ii
        L.append(valu('v_xor_b32', vTa[ii], str(i * 32), vVtr))
        for u in range(5):
            L.append(dsread(R('a', VF + i * 10 + u * 2, 2), vTa[ii], u * 4096, tag=f'VF{y}', op='ds_read_b64_tr_b16'))
    return L
def pv(y):
    L = []
    for z in range(3):
        for t in range(5):
            for ii in range(2):
                i = 2 * y + ii
                d = R('v', oacc(y, t, ii), 4)
                if z < 2: L.append(mfma(d, R('a', VF + i * 10 + z * 4, 4), R('v', PF[t] + z * 4, 4), '0' if z == 0 else d))
                else: L.append(mfma(d, R('a', VF + i * 10 + 8, 2), R('v', PF[t] + 8, 2), d, shape='16x16x16'))
    return L
vOw = f'v{TMP+2}'; vOb = f'v{TMP+3}'
E(salu('s_lshr_b32', sT0, sROT, '2')); E(salu('s_xor_b32', sT0, sT0, sW)); E(salu('s_mul_i32', sT0, sT0, '20480'))
E(valu('v_add_u32', vOb, sT0, vBF))
def owrite(y):
    L = [valu('v_xor_b32', vOw, str(y * 64), vOb)]
    for t in range(5):
        b0 = oacc(y, t, 0)
        for k in range(4): L.append(valu('v_cvt_pk_bf16_f32', f'v{b0+k}', f'v{b0+2*k}', f'v{b0+2*k+1}'))
        L.append(dswrite(vOw, R('v', b0, 4), XLDS + t * 4096, tag='OW'))
    return L
E(vreads(0)); E(Wait('VF0'))
for y in range(4):
    fill = []
    if y < 3: fill += vreads(y + 1)
    if y > 0: fill += owrite(y - 1)
    E(interleave(pv(y), fill, per=2, start=2 if y else 0))
    if y < 3: E(Wait(f'VF{y+1}'))
E(owrite(3))
E(baddr(0))
E(Wait('OW', 'CLR')); E(raw('s_barrier'))
for t in range(5): E(bfrag_read('O', 0, t))
E(salu('s_lshl_b32', sT0, sGRP, '3')); E(salu('s_add_u32', sT1, sT0, sHG))
E(valu('v_mov_b32', 'v10', '0')); E(valu('v_mov_b32', 'v11', '1'))
E(raw(f"s_cmp_lg_u32 {sW}, 0")); E(raw("s_cbranch_scc1 L_nf"))
E(raw("s_mov_b64 exec, 1")); E(raw(f"buffer_store_byte v11, v10, {sDBG}, {sT1} offen sc1")); E(raw("s_mov_b64 exec, -1"))
g.label('L_nf')
stamp()
vPub = 'v12'
pubsetup = [salu('s_mov_b32', sT2, '163840'),
            valu('v_mul_lo_u32', 'v14', vG, sT2), valu('v_add_u32', vPub, vCol, 'v14'),
            salu('s_mul_i32', sPUB, sGRP, '655360'), salu('s_mul_i32', sT2, sW, '20480'), salu('s_add_u32', sPUB, sPUB, sT2),
            salu('s_lshl_b32', sT2, sHG, '9'), salu('s_add_u32', sPUB, sPUB, sT2), salu('s_add_u32', sPUB, sPUB, str(INBOX))]
flagpoll = [bload('v[14:15]', 'v10', sDBG, sT0, tag='FL', flags=' sc1')]
PUBR = RING + 0
pk = [0]
def publish(t):
    L = []
    if t == 0:
        L += [Wait('FL'), raw('FLAGCHECK')]
    for r in range(4):
        d = PUBR + (pk[0] % 8) * 4; pk[0] += 1
        for m in range(4):
            if t < 4:
                L.append(valu('v_cvt_pk_bf16_f32', f'v{d+m}', accr(2*m, t, r), accr(2*m+1, t, r)))
            else:
                t0, t1 = f'v{T + (m % 2) * 2}', f'v{T + (m % 2) * 2 + 1}'
                L.append(valu('v_accvgpr_read_b32', t0, accr(2*m, t, r))); L.append(valu('v_accvgpr_read_b32', t1, accr(2*m+1, t, r)))
                L.append(valu('v_cvt_pk_bf16_f32', f'v{d+m}', t0, t1))
        L.append(salu('s_add_u32', sT1, sPUB, str((r >> 1) * 81920 + (r & 1) * 256 + t * 4096)))
        L.append(bstore(R('v', d, 4), vPub, sWS, sT1, tag='PS', flags=' sc1'))
    return L
extraO = {1: split(pubsetup), 12: [flagpoll]}
gemm('O', wo_soff, wo_load, extraO, 3, -1, publish)
stamp()
IB = 120
E(salu('s_mov_b32', sCNT, '0')); E(salu('s_mov_b32', sMASK, '0xffff0000'))
E(valu('v_and_b32', 'v13', '15', 'v0')); E(valu('v_lshlrev_b32', 'v13', '11', 'v13'))
E(valu('v_and_b32', 'v14', '1', vG)); E(valu('v_lshl_add_u32', 'v13', 'v14', '4', 'v13'))
E(valu('v_lshrrev_b32', 'v14', '1', vG)); E(valu('v_lshl_add_u32', 'v13', 'v14', '15', 'v13'))
E(salu('s_mul_i32', sOUTB, sB, str(80 * 2048))); E(salu('s_lshl_b32', sT0, sP, '10')); E(salu('s_add_u32', sOUTB, sOUTB, sT0))
E(salu('s_lshl_b32', sT0, sW, '8')); E(salu('s_add_u32', sOUTB, sOUTB, sT0)); E(salu('s_lshl_b32', sT0, sHG, '5')); E(salu('s_add_u32', sOUTB, sOUTB, sT0))
g.barrier_hist()
g.label('L_gather')
for t in range(5):
    E(salu('s_add_u32', sT1, sIN, str(t * 4096)))
    for k in range(4): E(bload(R('v', IB + t * 16 + k * 4, 4), vL16, sWS, sT1, off=k * 1024, tag=f'G{t}', flags=' sc1'))
mx = 'v14'
for t in range(5):
    E(Wait(f'G{t}'))
    for k in range(8):
        a_, b_ = f'v{IB + t*16 + 2*k}', f'v{IB + t*16 + 2*k + 1}'
        if t == 0 and k == 0: E(valu('v_max_u32', mx, a_, b_))
        else: E(valu('v_max3_u32', mx, mx, a_, b_))
E(raw(f"v_cmp_eq_u32 vcc, -1, {mx}", cls='valu', rd=[mx], wr=['vcc']))
E(raw("s_nop 4"))
E(raw("s_cbranch_vccz L_ready"))
E(salu('s_add_u32', sCNT, sCNT, '1')); E(raw(f"s_cmp_lt_u32 {sCNT}, 0x20000")); E(raw("s_sleep 2")); E(raw("s_cbranch_scc1 L_gather"))
g.label('L_ready')
stamp()
SUM = RING
def tsum(t):
    for k in range(4):
        for m in range(4):
            src = f'v{IB + t*16 + k*4 + m}'
            d = SUM + t * 8 + 2 * m
            if k == 0:
                E(valu('v_lshlrev_b32', f'v{d}', '16', src)); E(valu('v_and_b32', f'v{d+1}', sMASK, src))
            else:
                tm = T + (m % 4) * 2
                E(valu('v_lshlrev_b32', f'v{tm}', '16', src)); E(valu('v_and_b32', f'v{tm+1}', sMASK, src))
                E(valu('v_pk_add_f32', R('v', d, 2), R('v', d, 2), R('v', tm, 2)))
for pair in ((0, 1), (2, 3), (4, None)):
    ta, tb = pair
    tsum(ta)
    if tb is not None: tsum(tb)
    else:
        tb = 5
        for e in range(8): E(valu('v_mov_b32', f'v{SUM + tb*8 + e}', f'v{SUM + ta*8 + e}'))
    for e in range(8): E(valu('v_permlane32_swap_b32', f'v{SUM + ta*8 + e}', f'v{SUM + tb*8 + e}'))
    for e in range(0, 8, 2): E(valu('v_pk_add_f32', R('v', SUM + ta*8 + e, 2), R('v', SUM + ta*8 + e, 2), R('v', SUM + tb*8 + e, 2)))
    for m in range(4): E(valu('v_cvt_pk_bf16_f32', f'v{SUM + tb*8 + m}', f'v{SUM + ta*8 + 2*m}', f'v{SUM + ta*8 + 2*m + 1}'))
    E(salu('s_add_u32', sT1, sOUTB, str(ta * 32768)))
    if ta == 4: E(raw("s_mov_b64 exec, 0xffffffff"))
    E(bstore(R('v', SUM + tb * 8, 4), 'v13', sOUT, sT1, tag='OUT'))
E(raw("s_mov_b64 exec, -1"))
if STAMP:
    E(Wait('OUT'))
    stamp()
    E(raw(f"s_cmp_lg_u32 {sW}, 0")); E(raw("s_cbranch_scc1 L_end"))
    E(raw("s_mov_b64 exec, 1"))
    E(raw("s_lshl_b32 s96, s2, 7")); E(raw("v_mov_b32 v1, s96"))
    for k in range(stamp_n[0]):
        E(raw(f"v_mov_b32 v2, s{64+2*k}")); E(raw(f"v_mov_b32 v3, s{65+2*k}"))
        E(raw(f"buffer_store_dwordx2 v[2:3], v1, s[24:27], 0 offen offset:{k*8}")); E(raw("s_nop 1"))
    if not STEPS: E(raw(f"v_mov_b32 v2, {sCNT}")); E(raw(f"buffer_store_dwordx2 v[2:3], v1, s[24:27], 0 offen offset:120"))
g.label('L_end')
E(raw('s_endpgm'))
slow = [
 'L_flagslow:',
 raw("s_sleep 4"),
 raw(f"buffer_load_dwordx2 v[14:15], v10, {sDBG}, {sT0} offen sc1"),
 raw("s_waitcnt vmcnt(0)"),
 raw(f"s_add_u32 {sCNT}, {sCNT}, 1"), raw(f"s_cmp_lt_u32 {sCNT}, 0x40000"), raw("s_cbranch_scc1 L_flagchk"), raw("s_branch L_flagok"),
]
new = []
for x in g.out:
    if not isinstance(x, str) and x.text == 'FLAGCHECK':
        new += [raw(f"s_mov_b32 {sCNT}, 0"), 'L_flagchk:', raw("v_and_b32 v14, v14, v15", cls='valu'), raw("s_nop 0"), raw(f"v_readfirstlane_b32 {sT2}, v14"), raw("s_nop 3"),
                raw(f"s_cmp_lg_u32 {sT2}, 0x01010101"), raw("s_cbranch_scc1 L_flagslow"), 'L_flagok:']
    else: new.append(x)
g.out = new + slow
nbytes = align8(g)
print("stamps", stamp_n[0], "nops", g.nnop, "instrs", len(g.out), file=sys.stderr)
assert nbytes < 32768 + 96 * 128

K1 = NAME + "_kernel"
txt = f"""; generated by gen2.py
; @launch grid=(256,1,1) block=(256,1,1) lds=163840
.amdgcn_target "amdgcn-amd-amdhsa--gfx950"
.text
.globl {K1}
.p2align 8
.type {K1},@function
{K1}:
{g.text()}
.fill 3072, 4, 0xBF800000
.section .rodata,"a"
.p2align 6
.amdhsa_kernel {K1}
  .amdhsa_next_free_vgpr {256+232}
  .amdhsa_next_free_sgpr 102
  .amdhsa_accum_offset 256
  .amdhsa_group_segment_fixed_size 0
  .amdhsa_kernarg_size 104
  .amdhsa_user_sgpr_count 2
  .amdhsa_user_sgpr_kernarg_segment_ptr 1
  .amdhsa_system_sgpr_workgroup_id_x 1
.end_amdhsa_kernel
"""
open(out_path, 'w').write(txt)
```

```python
import sys, math, struct
from fw import *

NAME = "concat_heads__gqa_block_cached__gqa_block_cached__near_ridge"
STAMP = '--stamp' in sys.argv
def opt(name, default):
    for a in sys.argv:
        if a.startswith(f'--{name}='): return int(a.split('=')[1])
    return default
ROTMASK = opt('rotmask', 15)
KSTART = opt('kstart', 0)
KREAD = opt('kread', 8)
VSTART = opt('vstart', 9)
VPER = opt('vper', 1)
PFCODE = opt('pfcode', 1)
out_path = sys.argv[1]

g = Gen()
E = g.emit
sX, sK, sV, sWQ, sWO, sWS, sOUT, sDBG = 's[4:7]', 's[8:11]', 's[12:15]', 's[16:19]', 's[20:23]', 's[24:27]', 's[28:31]', 's[32:35]'
sP, sB, sHG, sW, sH, sROT = 's36', 's37', 's38', 's39', 's40', 's41'
sSEL = ['s42', 's43']; sC = 's44'
sKV = 's45'; sXB = 's46'
sT0, sT1, sT2, sT3 = 's47', 's48', 's49', 's50'
sWoff = 's51'; sWbase = 's52'; sVL = 's53'; sXM = 's54'
sGRP = 's55'; sIN = 's56'; sMASK = 's57'; sCNT = 's58'; sOUTB = 's59'; sPUB = 's60'
vL16, vBF, vBFr, vBc, vXs, vVs0, vVtr = 'v1', 'v2', 'v3', 'v4', 'v5', 'v6', 'v7'
vW = [f'v{8+j}' for j in range(8)]
RING, RN = 16, 3
PB = 112
ACC = 120
TMP = 248
vCol, vG = f'v{TMP+7}', f'v{TMP+6}'
vKs = [f'v{TMP+k}' for k in range(4)]
vVs1 = f'v{TMP+4}'
vKr = f'v{TMP+5}'
def acc(i, t): return R('v', ACC + (t * 8 + i) * 4, 4) if t < 4 else R('a', i * 4, 4)
def accr(i, t, r): return f'v{ACC + (t*8+i)*4 + r}' if t < 4 else f'a{i*4+r}'
XF, KF, VF = 32, 72, 152
XLDS, VLDS = 0, 81920
INBOX = 1 << 20

stamp_n = [0]
STEPS = 'Q' if '--stepsQ' in sys.argv else ('O' if '--stepsO' in sys.argv else None)
def sstamp(ph):
    if STEPS != ph: return
    k = stamp_n[0]; stamp_n[0] += 1
    E(raw(f"s_memtime s[{64+2*k}:{65+2*k}]"))
def stamp():
    if not STAMP or STEPS: return
    k = stamp_n[0]; stamp_n[0] += 1
    E(raw("s_memrealtime s[96:97]")); E(raw("s_memtime s[98:99]")); E(raw("s_waitcnt lgkmcnt(0)"))
    g.lg_done = len(g.lg)
    E(raw(f"s_mov_b32 s{64+2*k}, s96")); E(raw(f"s_mov_b32 s{65+2*k}, s98"))

E(raw("s_cmp_ge_u32 s2, 256")); E(raw("s_cbranch_scc1 L_end"))
if STAMP: E(raw("s_memrealtime s[96:97]")); E(raw("s_memtime s[98:99]"))
E(raw("s_load_dwordx16 s[64:79], s[0:1], 0"))
E(raw("s_load_dwordx8 s[80:87], s[0:1], 64"))
E(raw("s_load_dwordx2 s[88:89], s[0:1], 96"))
if PFCODE:
    E(raw("s_getpc_b64 s[90:91]", wr=['s90', 's91']))
    E(valu('v_lshlrev_b32', 'v8', '7', 'v0'))
    E(valu('v_mov_b32', 'v9', 's91'))
    E(raw("v_add_co_u32 v8, vcc, s90, v8", cls='valu', rd=['s90', 'v8'], wr=['v8', 'vcc']))
    E(raw("v_addc_co_u32 v9, vcc, 0, v9, vcc", cls='valu', rd=['v9', 'vcc'], wr=['v9', 'vcc']))
    E(I("global_load_dword v112, v[8:9], off", 'vmem', ['v8', 'v9'], ['v112'], tag='PF', cnt='vm'))
    E(raw("v_add_co_u32 v8, vcc, 0x8000, v8", cls='valu', rd=['v8'], wr=['v8', 'vcc']))
    E(raw("v_addc_co_u32 v9, vcc, 0, v9, vcc", cls='valu', rd=['v9', 'vcc'], wr=['v9', 'vcc']))
    E(raw("v_cmp_gt_u32 vcc, 96, v0", cls='valu', rd=['v0'], wr=['vcc']))
    E(raw("s_nop 1")); E(raw("s_and_saveexec_b64 s[92:93], vcc")); E(raw("s_cbranch_execz L_pf"))
    E(raw("global_load_dword v113, v[8:9], off"))
    g.label('L_pf')
    E(raw("s_mov_b64 exec, s[92:93]"))
E(salu('s_and_b32', sP, 's2', '1'))
E(salu('s_lshr_b32', sT0, 's2', '1')); E(salu('s_and_b32', sT0, sT0, '3'))
E(salu('s_lshr_b32', sT1, 's2', '3'))
E(salu('s_and_b32', sT2, sT1, '1'))
E(salu('s_lshl_b32', sHG, sT0, '1')); E(salu('s_add_u32', sHG, sHG, sT2))
E(salu('s_lshr_b32', sB, sT1, '1'))
E(valu('v_lshrrev_b32', 'v8', '6', 'v0'))
E(valu('v_and_b32', 'v0', '63', 'v0'))
E(valu('v_readfirstlane_b32', sW, 'v8'))
E(valu('v_lshrrev_b32', vG, '4', 'v0'))
E(valu('v_and_b32', 'v10', '15', 'v0'))
E(valu('v_lshlrev_b32', vL16, '4', 'v0'))
E(valu('v_xor_b32', 'v11', 'v10', vG))
E(valu('v_lshlrev_b32', 'v11', '4', 'v11'))
E(valu('v_lshl_add_u32', vBF, 'v10', '8', 'v11'))
E(salu('s_and_b32', sROT, sB, str(ROTMASK)))
E(salu('s_and_b32', sT0, sROT, '3')); E(salu('s_lshl_b32', sT0, sT0, '6'))
E(valu('v_xor_b32', vBFr, sT0, vBF))
E(valu('v_lshl_add_u32', vXs, vG, '10', 'v11'))
E(salu('s_mul_i32', sT0, sW, str(4096 + 64)))
E(valu('v_xor_b32', vXs, sT0, vXs))
E(valu('v_lshlrev_b32', 'v12', '2', vG))
E(valu('v_xor_b32', 'v12', 'v12', 'v10'))
E(valu('v_lshlrev_b32', 'v12', '4', 'v12'))
E(valu('v_lshl_add_u32', vKs[0], vG, '8', 'v12'))
for v in range(1, 4): E(valu('v_xor_b32', vKs[v], str(v * 16), vKs[0]))
E(valu('v_and_b32', 'v12', '3', 'v10'))
E(valu('v_xor_b32', 'v12', 'v12', vG))
E(valu('v_lshrrev_b32', 'v13', '2', 'v10'))
E(valu('v_lshl_add_u32', 'v12', 'v12', '2', 'v13'))
E(valu('v_lshlrev_b32', 'v12', '4', 'v12'))
E(valu('v_lshl_add_u32', vKr, 'v10', '8', 'v12'))
E(valu('v_lshrrev_b32', 'v12', '1', 'v10'))
E(valu('v_xor_b32', 'v12', 'v12', vG))
E(valu('v_lshlrev_b32', 'v12', '5', 'v12'))
E(valu('v_and_b32', 'v13', '1', 'v10'))
E(valu('v_lshl_add_u32', 'v12', 'v13', '4', 'v12'))
E(valu('v_lshl_add_u32', vVs0, vG, '8', 'v12'))
E(valu('v_xor_b32', vVs1, '128', vVs0))
E(valu('v_lshrrev_b32', 'v12', '2', 'v0'))
E(valu('v_and_b32', 'v13', '7', 'v12'))
E(valu('v_lshlrev_b32', 'v13', '5', 'v13'))
E(valu('v_lshl_add_u32', 'v13', 'v12', '8', 'v13'))
E(valu('v_and_b32', 'v12', '3', 'v0'))
E(valu('v_lshl_add_u32', vVtr, 'v12', '3', 'v13'))
E(valu('v_lshlrev_b32', vCol, '4', 'v10'))
E(valu('v_lshl_add_u32', vW[0], vG, '16', vCol))
for j in range(1, 8): E(valu('v_add_u32', vW[j], str(8192 * j), vW[0]))
E(salu('s_lshl_b32', sH, sHG, '2')); E(salu('s_add_u32', sH, sH, sW))
E(salu('s_mov_b32', sSEL[0], '0x05040100')); E(salu('s_mov_b32', sSEL[1], '0x07060302'))
cval = (128 ** -0.5) * math.log2(math.e)
E(salu('s_mov_b32', sC, hex(struct.unpack('<I', struct.pack('<f', cval))[0])))
E(salu('s_lshl_b32', sKV, sB, '5')); E(salu('s_add_u32', sKV, sKV, sH)); E(salu('s_mul_i32', sKV, sKV, '20480'))
E(salu('s_mul_i32', sXB, sB, '81920'))
E(salu('s_lshr_b32', sT0, sROT, '2')); E(salu('s_lshl_b32', sT0, sT0, '8')); E(salu('s_add_u32', sXB, sXB, sT0))
E(salu('s_lshl_b32', sXM, sW, '10'))
E(salu('s_mul_i32', sVL, sW, '20480')); E(salu('s_add_u32', sVL, sVL, str(VLDS)))
E(valu('v_add_u32', vVtr, sVL, vVtr))
E(valu('v_add_u32', vKr, sVL, vKr))
E(salu('s_lshl_b32', sWbase, sH, '8')); E(salu('s_lshl_b32', sT0, sROT, '18')); E(salu('s_add_u32', sWbase, sWbase, sT0))
E(salu('s_lshl_b32', sGRP, sP, '4')); E(salu('s_add_u32', sGRP, sGRP, sB))
E(raw("s_waitcnt lgkmcnt(0)"))
E(raw(f"s_cmp_eq_u32 {sP}, 0"))
def srd(base, pa, pb, size):
    E(raw(f"s_cselect_b32 s{base}, s{pa}, s{pb}")); E(raw(f"s_cselect_b32 s{base+1}, s{pa+1}, s{pb+1}"))
    E(raw(f"s_mov_b32 s{base+2}, {size}")); E(raw(f"s_mov_b32 s{base+3}, 0x00020000"))
srd(4, 64, 74, 1310720); srd(16, 70, 80, 4194304)

def xdma(n):
    L = [salu('s_xor_b32', sT0, sXB, str(n * 256))]
    for t in range(5):
        L.append(salu('s_add_u32', 'm0', sXM, str(XLDS + n * 20480 + t * 4096)))
        L.append(salu('s_add_u32', sT2, sT0, str(t * 16384)))
        L.append(bload_lds(vXs, sX, sT2, tag=f'X{n}'))
    return L
def wq_soff(i): return [salu('s_xor_b32', sWoff, sWbase, str(i << 18))]
def wq_load(i, j): return bload(R('v', RING + (i % RN) * 32 + j * 4, 4), vW[j], sWQ, sWoff, tag=f'Q{i}')
def wo_soff(i): return [salu('s_xor_b32', sWoff, sWbase, str(i << 15))]
def wo_load(i, j): return bload(R('v', RING + (i % RN) * 32 + j * 4, 4), vW[j >> 2], sWO, sWoff, off=(j & 3) * 1024, tag=f'O{i}')
def kquad(u):
    L = [[salu('s_add_u32', sT3, sKV, str(u * 4096)), salu('s_add_u32', 'm0', sVL, str(u * 4096)), bload_lds(vKs[0], sK, sT3, tag='K')]]
    for v in range(1, 4): L.append([bload_lds(vKs[v], sK, sT3, off=v * 1024, tag='K')])
    return L
def vquad(u):
    L = [[salu('s_add_u32', sT3, sKV, str(u * 4096)), salu('s_add_u32', 'm0', sVL, str(u * 4096)), bload_lds(vVs0, sV, sT3, tag='V')]]
    for v in range(1, 4): L.append([bload_lds(vVs1 if v & 1 else vVs0, sV, sT3, off=v * 1024, tag='V')])
    return L
def kreads():
    L = []
    for r in range(4):
        grp = [valu('v_xor_b32', vKs[r], str(r * 16), vKr)]
        if r == 0: grp = [Wait('K')] + grp
        for u in range(5):
            grp.append(dsread(R('a', KF + (u * 4 + r) * 4, 4), vKs[r], u * 4096, tag='KF'))
            L.append(grp); grp = []
    return L
def baddr(i): return valu('v_xor_b32', vBc, str(XLDS + (i & 3) * 64 + (i >> 2) * 20480), vBFr)
def bfrag(i, t): return R('a', XF + (i % 2) * 20 + t * 4, 4)
def bfrag_read(ph, i, t): return dsread(bfrag(i, t), vBc, t * 4096, tag=f'{ph}B{i}')
def perm(i, tile, q, dst=None):
    lo = RING + (i % RN) * 32 + (2 * q) * 4 + (tile >> 1)
    d = PB + (tile % 2) * 4 + q if dst is None else dst + tile * 4 + q
    return valu('v_perm_b32', f'v{d}', f'v{lo+4}', f'v{lo}', sSEL[tile % 2])

def gemm(ph, soff_f, load_f, extra, pre_issued, barrier_at, tail_fill):
    E(Wait(f'{ph}0'))
    for q in range(4): E(perm(0, 0, q))
    F14 = RING + (13 % RN) * 32
    for i in range(14):
        sstamp(ph)
        ex = list(extra.get(i, []))
        for tile in range(8):
            fill = [[] for _ in range(5)]
            ni, nt = (i, tile + 1) if tile < 7 else (i + 1, 0)
            if ni < 14:
                if nt == 0: fill[0].append(Wait(f'{ph}{ni}'))
                fill[0] += [perm(ni, nt, 0), perm(ni, nt, 1)]
                fill[1] += [perm(ni, nt, 2), perm(ni, nt, 3)]
            li, j = (i + RN, 0) if tile == 7 else (i - 1 + RN, tile + 1)
            if pre_issued <= li < 16:
                if j == 0: fill[2] += soff_f(li)
                fill[2].append(load_f(li, j))
            if tile < 5:
                if tile == 0:
                    if barrier_at == i: fill[3].append(raw('s_barrier'))
                    fill[3].append(baddr(i + 1))
                fill[3].append(bfrag_read(ph, i + 1, tile))
            if ex:
                k = (len(ex) + (7 - tile)) // (8 - tile)
                for _ in range(k): fill[4] += ex.pop(0)
            if i == 13 and tile == 7:
                fill[0] += [Wait(f'{ph}14')] + [perm(14, 0, q, F14) for q in range(2)]
                fill[1] += [perm(14, 0, q, F14) for q in range(2, 4)]
                fill[2] += [perm(14, 1, q, F14) for q in range(2)]
                fill[3] += [perm(14, 1, q, F14) for q in range(2, 4)]
                fill[4] += [perm(14, 2, q, F14) for q in range(2)]
            if tile == 0: E(Wait(f'{ph}B{i}'))
            for t in range(5):
                a_ = acc(tile, t)
                E(mfma(a_, R('v', PB + (tile % 2) * 4, 4), bfrag(i, t), '0' if i == 0 else a_))
                E(fill[t])
    F15 = RING + (14 % RN) * 32
    p14 = [perm(14, 2, q, F14) for q in range(2, 4)] + [perm(14, tl, q, F14) for tl in range(3, 8) for q in range(4)]
    p15 = [Wait(f'{ph}15')] + [perm(15, tl, q, F15) for tl in range(8) for q in range(4)]
    b15 = [baddr(15)] + [bfrag_read(ph, 15, t) for t in range(5)]
    sstamp(ph)
    E(Wait(f'{ph}B14'))
    def M(i, tile, t):
        F = F14 if i == 14 else F15
        return mfma(acc(tile, t), R('v', F + tile * 4, 4), bfrag(i, t), acc(tile, t))
    seq1 = [M(14, tl, t) for tl in range(8) for t in range(3)]
    fill1 = b15[:3] + p14[:2] + b15[3:] + p14[2:] + p15
    E(interleave(seq1, fill1[:48], per=2))
    rest = fill1[48:]
    E(Wait(f'{ph}B15'))
    seq2 = [M(14, tl, 3) for tl in range(8)]
    E(interleave(seq2, rest, per=2))
    order = [('a', 0), ('a', 1), ('b', 4), ('a', 2), ('a', 3), ('a', 4)]
    pend = []
    for kind, t in order:
        seq = [M(15 if kind == 'a' else 14, tl, t) for tl in range(8)]
        E(interleave(seq, pend[:14] , per=2, start=1)); pend = pend[14:]
        if kind == 'a': pend = pend + tail_fill(t)
    E(pend)
    sstamp(ph)

E(xdma(0))
E(wq_soff(0))
for j in range(8): E(wq_load(0, j))
E(raw(f"s_cmp_eq_u32 {sP}, 0"))
srd(8, 66, 76, 10485760); srd(12, 68, 78, 10485760); srd(20, 72, 82, 4194304)
srd(24, 88, 88, 268435456); srd(28, 84, 84, 2621440); srd(32, 86, 86, 256)
if STAMP and not STEPS:
    E(raw("s_mov_b32 s64, s96")); E(raw("s_mov_b32 s65, s98")); stamp_n[0] = 1
E(wq_soff(1))
for j in range(8): E(wq_load(1, j))
E(baddr(0))
E(Wait('X0')); E(raw('s_barrier'))
for t in range(5): E(bfrag_read('Q', 0, t))
E(wq_soff(2))
for j in range(8): E(wq_load(2, j))
stamp()
extra = {i: [] for i in range(14)}
def split(L, n=3):
    return [L[k:k+n] for k in range(0, len(L), n)]
for n in (1, 2, 3):
    x = xdma(n); extra[0] += [x[:4]] + split(x[4:])
for u in range(5): extra[max(KSTART + u, 1)] += kquad(u)
extra[KREAD] += kreads()
vq = [vquad(u) for u in range(5)]
vq[0][0] = [Wait('KF')] + vq[0][0]
vpost = []
for u in range(5):
    st = VSTART + u // VPER
    if st < 14: extra[st] += vq[u]
    else: vpost += vq[u]

QF = [RING + 0, RING + 16, 120, 136, 152]
T = PB
def cq(t):
    L = []
    for r in range(4):
        for m in range(4):
            if t < 4:
                L.append(valu('v_cvt_pk_bf16_f32', f'v{QF[t] + r*4 + m}', accr(2*m, t, r), accr(2*m+1, t, r)))
            else:
                t0, t1 = f'v{T + (m % 2) * 2}', f'v{T + (m % 2) * 2 + 1}'
                L.append(valu('v_accvgpr_read_b32', t0, accr(2*m, t, r)))
                L.append(valu('v_accvgpr_read_b32', t1, accr(2*m+1, t, r)))
                L.append(valu('v_cvt_pk_bf16_f32', f'v{QF[t] + r*4 + m}', t0, t1))
    if t == 0:
        for x in vpost: L += x
    return L
gemm('Q', wq_soff, wq_load, extra, 3, 3, cq)
stamp()
E(raw('s_barrier'))

def wo_load(i, j): return bload(R('v', RING + (i % RN) * 32 + j * 4, 4), vW[j >> 2], sWO, sWoff, off=(j & 3) * 1024, tag=f'O{i}')
wo_pre = [valu('v_lshl_add_u32', vW[0], vG, '12', vCol), valu('v_add_u32', vW[1], '16384', vW[0]),
          salu('s_lshl_b32', sWbase, sHG, '19'), salu('s_lshl_b32', sT0, sW, '8'), salu('s_add_u32', sWbase, sWbase, sT0),
          salu('s_lshl_b32', sT0, sROT, '15'), salu('s_add_u32', sWbase, sWbase, sT0)]
def wo_batch(i): return wo_soff(i) + [wo_load(i, j) for j in range(8)]

vOnes = 'v[10:13]'
clear = [salu('s_lshl_b32', sIN, sGRP, '3'), salu('s_add_u32', sIN, sIN, sHG), salu('s_lshl_b32', sIN, sIN, '2'), salu('s_add_u32', sIN, sIN, sW),
         salu('s_mul_i32', sIN, sIN, '20480'), salu('s_add_u32', sIN, sIN, str(INBOX))]
clear += [valu('v_mov_b32', f'v{10+k}', '-1') for k in range(4)]
for t in range(5):
    clear.append(salu('s_add_u32', sT1, sIN, str(t * 4096)))
    for k in range(4): clear.append(bstore(vOnes, vL16, sWS, sT1, off=k * 1024, tag='CLR', flags=' sc1'))

SB = [168, 188]
PF = [208, 218, 228, 238, 120]
def qk(t):
    L = []
    for r in range(4):
        for u in range(5):
            d = R('v', SB[t % 2] + u * 4, 4)
            L.append(mfma(d, R('a', KF + (u * 4 + r) * 4, 4), R('v', QF[t] + r * 4, 4), '0' if r == 0 else d))
    return L
def softmax(t):
    s = [f'v{SB[t % 2] + k}' for k in range(20)]
    m, t1, sm, sm2 = f'v{T}', f'v{T+1}', f'v{T+2}', f'v{T+3}'
    L = [valu('v_max3_f32', m, s[0], s[1], s[2]), valu('v_max3_f32', t1, s[3], s[4], s[5])]
    for k in range(6, 18, 4):
        L.append(valu('v_max3_f32', m, m, s[k], s[k+1])); L.append(valu('v_max3_f32', t1, t1, s[k+2], s[k+3]))
    L.append(valu('v_max3_f32', m, m, s[18], s[19]))
    L.append(valu('v_max_f32', m, m, t1))
    for op in ('v_permlane32_swap_b32', 'v_permlane16_swap_b32'):
        L.append(valu('v_mov_b32', t1, m)); L.append(valu(op, m, t1)); L.append(valu('v_max_f32', m, m, t1))
    L.append(valu('v_mul_f32', m, sC, m))
    for k in range(20): L.append(valu('v_fma_f32', s[k], s[k], sC, '-' + m))
    for k in range(20): L.append(valu('v_exp_f32', s[k], s[k]))
    L.append(valu('v_add_f32', sm, s[0], s[1])); L.append(valu('v_add_f32', sm2, s[2], s[3]))
    for k in range(4, 20, 2):
        L.append(valu('v_add_f32', sm, sm, s[k])); L.append(valu('v_add_f32', sm2, sm2, s[k+1]))
    L.append(valu('v_add_f32', sm, sm, sm2))
    for op in ('v_permlane32_swap_b32', 'v_permlane16_swap_b32'):
        L.append(valu('v_mov_b32', sm2, sm)); L.append(valu(op, sm, sm2)); L.append(valu('v_add_f32', sm, sm, sm2))
    L.append(valu('v_rcp_f32', sm, sm))
    for k in range(20): L.append(valu('v_mul_f32', s[k], s[k], sm))
    for k in range(10): L.append(valu('v_cvt_pk_bf16_f32', f'v{PF[t] + k}', s[2*k], s[2*k+1]))
    return L
def weave(a, b):
    out = []; nb = len(b); na = len(a); j = 0
    for k, x in enumerate(a):
        while j < nb and j * na <= k * nb:
            out.append(b[j]); j += 1
        out.append(x)
    out += b[j:]
    return out

E(Wait('KF'))
E(interleave(qk(0), wo_pre + wo_batch(1) + wo_batch(2), per=2))
for t in range(5):
    other = qk(t + 1) if t < 4 else []
    if t == 1: other = weave(other, wo_batch(0))
    other = weave(other, clear[:15] if t == 0 else clear[10 + 5 * t: 15 + 5 * t]) if other else clear[10 + 5 * t: 15 + 5 * t]
    E(weave(softmax(t), other))
stamp()
E(Wait('V'))
def oacc(y, t, ii):
    if y % 2 == 0: return 130 + t * 8 + ii * 4
    if t < 4: return 170 + t * 8 + ii * 4
    return 112 + ii * 4
vTa = [f'v{TMP}', f'v{TMP+1}']
def vreads(y):
    L = []
    for ii in range(2):
        i = 2 * y + ii
        L.append(valu('v_xor_b32', vTa[ii], str(i * 32), vVtr))
        for u in range(5):
            L.append(dsread(R('a', VF + i * 10 + u * 2, 2), vTa[ii], u * 4096, tag=f'VF{y}', op='ds_read_b64_tr_b16'))
    return L
def pv(y):
    L = []
    for z in range(3):
        for t in range(5):
            for ii in range(2):
                i = 2 * y + ii
                d = R('v', oacc(y, t, ii), 4)
                if z < 2: L.append(mfma(d, R('a', VF + i * 10 + z * 4, 4), R('v', PF[t] + z * 4, 4), '0' if z == 0 else d))
                else: L.append(mfma(d, R('a', VF + i * 10 + 8, 2), R('v', PF[t] + 8, 2), d, shape='16x16x16'))
    return L
vOw = f'v{TMP+2}'; vOb = f'v{TMP+3}'
E(salu('s_lshr_b32', sT0, sROT, '2')); E(salu('s_xor_b32', sT0, sT0, sW)); E(salu('s_mul_i32', sT0, sT0, '20480'))
E(valu('v_add_u32', vOb, sT0, vBF))
def owrite(y):
    L = [valu('v_xor_b32', vOw, str(y * 64), vOb)]
    for t in range(5):
        b0 = oacc(y, t, 0)
        for k in range(4): L.append(valu('v_cvt_pk_bf16_f32', f'v{b0+k}', f'v{b0+2*k}', f'v{b0+2*k+1}'))
        L.append(dswrite(vOw, R('v', b0, 4), XLDS + t * 4096, tag='OW'))
    return L
E(vreads(0)); E(Wait('VF0'))
for y in range(4):
    fill = []
    if y < 3: fill += vreads(y + 1)
    if y > 0: fill += owrite(y - 1)
    E(interleave(pv(y), fill, per=2, start=2 if y else 0))
    if y < 3: E(Wait(f'VF{y+1}'))
E(owrite(3))
E(baddr(0))
E(Wait('OW', 'CLR')); E(raw('s_barrier'))
for t in range(5): E(bfrag_read('O', 0, t))
E(salu('s_lshl_b32', sT0, sGRP, '2')); E(salu('s_add_u32', sT0, sT0, '128'))
E(valu('v_mov_b32', 'v10', '0')); E(valu('v_mov_b32', 'v11', '1'))
E(raw(f"s_cmp_lg_u32 {sW}, 0")); E(raw("s_cbranch_scc1 L_nf"))
E(raw("s_mov_b64 exec, 1")); E(raw(f"buffer_atomic_add v11, v10, {sDBG}, {sT0} offen sc1")); E(raw("s_mov_b64 exec, -1"))
g.label('L_nf')
stamp()
vPub = 'v12'
pubsetup = [salu('s_mov_b32', sT2, '163840'),
            valu('v_mul_lo_u32', 'v14', vG, sT2), valu('v_add_u32', vPub, vCol, 'v14'),
            salu('s_mul_i32', sPUB, sGRP, '655360'), salu('s_mul_i32', sT2, sW, '20480'), salu('s_add_u32', sPUB, sPUB, sT2),
            salu('s_lshl_b32', sT2, sHG, '9'), salu('s_add_u32', sPUB, sPUB, sT2), salu('s_add_u32', sPUB, sPUB, str(INBOX))]
flagpoll = [bload('v14', 'v10', sDBG, sT0, tag='FL', flags=' sc1')]
PUBR = RING + 0
pk = [0]
def publish(t):
    L = []
    if t == 0:
        L += [Wait('FL'), raw('FLAGCHECK')]
    for r in range(4):
        d = PUBR + (pk[0] % 8) * 4; pk[0] += 1
        for m in range(4):
            if t < 4:
                L.append(valu('v_cvt_pk_bf16_f32', f'v{d+m}', accr(2*m, t, r), accr(2*m+1, t, r)))
            else:
                t0, t1 = f'v{T + (m % 2) * 2}', f'v{T + (m % 2) * 2 + 1}'
                L.append(valu('v_accvgpr_read_b32', t0, accr(2*m, t, r))); L.append(valu('v_accvgpr_read_b32', t1, accr(2*m+1, t, r)))
                L.append(valu('v_cvt_pk_bf16_f32', f'v{d+m}', t0, t1))
        L.append(salu('s_add_u32', sT1, sPUB, str((r >> 1) * 81920 + (r & 1) * 256 + t * 4096)))
        L.append(bstore(R('v', d, 4), vPub, sWS, sT1, tag='PS', flags=' sc1'))
    return L
extraO = {1: split(pubsetup), 12: [flagpoll]}
gemm('O', wo_soff, wo_load, extraO, 3, -1, publish)
stamp()
IB = 120
E(salu('s_mov_b32', sCNT, '0')); E(salu('s_mov_b32', sMASK, '0xffff0000'))
E(valu('v_and_b32', 'v13', '15', 'v0')); E(valu('v_lshlrev_b32', 'v13', '11', 'v13'))
E(valu('v_and_b32', 'v14', '1', vG)); E(valu('v_lshl_add_u32', 'v13', 'v14', '4', 'v13'))
E(valu('v_lshrrev_b32', 'v14', '1', vG)); E(valu('v_lshl_add_u32', 'v13', 'v14', '15', 'v13'))
E(salu('s_mul_i32', sOUTB, sB, str(80 * 2048))); E(salu('s_lshl_b32', sT0, sP, '10')); E(salu('s_add_u32', sOUTB, sOUTB, sT0))
E(salu('s_lshl_b32', sT0, sW, '8')); E(salu('s_add_u32', sOUTB, sOUTB, sT0)); E(salu('s_lshl_b32', sT0, sHG, '5')); E(salu('s_add_u32', sOUTB, sOUTB, sT0))
g.barrier_hist()
g.label('L_gather')
for t in range(5):
    E(salu('s_add_u32', sT1, sIN, str(t * 4096)))
    for k in range(4): E(bload(R('v', IB + t * 16 + k * 4, 4), vL16, sWS, sT1, off=k * 1024, tag=f'G{t}', flags=' sc1'))
mx = 'v14'
for t in range(5):
    E(Wait(f'G{t}'))
    for k in range(8):
        a_, b_ = f'v{IB + t*16 + 2*k}', f'v{IB + t*16 + 2*k + 1}'
        if t == 0 and k == 0: E(valu('v_max_u32', mx, a_, b_))
        else: E(valu('v_max3_u32', mx, mx, a_, b_))
E(raw(f"v_cmp_eq_u32 vcc, -1, {mx}", cls='valu', rd=[mx], wr=['vcc']))
E(raw("s_nop 4"))
E(raw("s_cbranch_vccz L_ready"))
E(salu('s_add_u32', sCNT, sCNT, '1')); E(raw(f"s_cmp_lt_u32 {sCNT}, 0x20000")); E(raw("s_sleep 2")); E(raw("s_cbranch_scc1 L_gather"))
g.label('L_ready')
stamp()
SUM = RING
def tsum(t):
    for k in range(4):
        for m in range(4):
            src = f'v{IB + t*16 + k*4 + m}'
            d = SUM + t * 8 + 2 * m
            if k == 0:
                E(valu('v_lshlrev_b32', f'v{d}', '16', src)); E(valu('v_and_b32', f'v{d+1}', sMASK, src))
            else:
                tm = T + (m % 4) * 2
                E(valu('v_lshlrev_b32', f'v{tm}', '16', src)); E(valu('v_and_b32', f'v{tm+1}', sMASK, src))
                E(valu('v_pk_add_f32', R('v', d, 2), R('v', d, 2), R('v', tm, 2)))
for pair in ((0, 1), (2, 3), (4, None)):
    ta, tb = pair
    tsum(ta)
    if tb is not None: tsum(tb)
    else:
        tb = 5
        for e in range(8): E(valu('v_mov_b32', f'v{SUM + tb*8 + e}', f'v{SUM + ta*8 + e}'))
    for e in range(8): E(valu('v_permlane32_swap_b32', f'v{SUM + ta*8 + e}', f'v{SUM + tb*8 + e}'))
    for e in range(0, 8, 2): E(valu('v_pk_add_f32', R('v', SUM + ta*8 + e, 2), R('v', SUM + ta*8 + e, 2), R('v', SUM + tb*8 + e, 2)))
    for m in range(4): E(valu('v_cvt_pk_bf16_f32', f'v{SUM + tb*8 + m}', f'v{SUM + ta*8 + 2*m}', f'v{SUM + ta*8 + 2*m + 1}'))
    E(salu('s_add_u32', sT1, sOUTB, str(ta * 32768)))
    if ta == 4: E(raw("s_mov_b64 exec, 0xffffffff"))
    E(bstore(R('v', SUM + tb * 8, 4), 'v13', sOUT, sT1, tag='OUT'))
E(raw("s_mov_b64 exec, -1"))
if STAMP:
    E(Wait('OUT'))
    stamp()
    E(raw(f"s_cmp_lg_u32 {sW}, 0")); E(raw("s_cbranch_scc1 L_end"))
    E(raw("s_mov_b64 exec, 1"))
    E(raw("s_lshl_b32 s96, s2, 7")); E(raw("v_mov_b32 v1, s96"))
    for k in range(stamp_n[0]):
        E(raw(f"v_mov_b32 v2, s{64+2*k}")); E(raw(f"v_mov_b32 v3, s{65+2*k}"))
        E(raw(f"buffer_store_dwordx2 v[2:3], v1, s[24:27], 0 offen offset:{k*8}")); E(raw("s_nop 1"))
    if '--hstamp' in sys.argv:
        E(raw("v_mov_b32 v1, 0"))
        E(raw("s_not_b32 s96, s64")); E(raw("v_mov_b32 v2, s96")); E(raw(f"buffer_atomic_umax v2, v1, {sDBG}, 0 offen sc1")); E(raw("s_nop 1"))
        for k in range(stamp_n[0]):
            E(raw(f"v_mov_b32 v2, s{64+2*k}")); E(raw(f"buffer_atomic_umax v2, v1, {sDBG}, 0 offen offset:{4+4*k} sc1")); E(raw("s_nop 1"))
        E(raw("s_lshl_b32 s96, s2, 7")); E(raw("v_mov_b32 v1, s96"))
    if not STEPS: E(raw(f"v_mov_b32 v2, {sCNT}")); E(raw(f"buffer_store_dwordx2 v[2:3], v1, s[24:27], 0 offen offset:120"))
g.label('L_end')
E(raw('s_endpgm'))
slow = [
 'L_flagslow:',
 raw("s_sleep 4"),
 raw(f"buffer_load_dword v14, v10, {sDBG}, {sT0} offen sc1"),
 raw("s_waitcnt vmcnt(0)"),
 raw(f"s_add_u32 {sCNT}, {sCNT}, 1"), raw(f"s_cmp_lt_u32 {sCNT}, 0x40000"), raw("s_cbranch_scc1 L_flagchk"), raw("s_branch L_flagok"),
]
new = []
for x in g.out:
    if not isinstance(x, str) and x.text == 'FLAGCHECK':
        new += [raw(f"s_mov_b32 {sCNT}, 0"), 'L_flagchk:', raw(f"v_readfirstlane_b32 {sT2}, v14"), raw("s_nop 3"),
                raw(f"s_cmp_lg_u32 {sT2}, 8"), raw("s_cbranch_scc1 L_flagslow"), 'L_flagok:']
    else: new.append(x)
g.out = new + slow
nbytes = align8(g)
print("stamps", stamp_n[0], "nops", g.nnop, "instrs", len(g.out), file=sys.stderr)
assert nbytes < 32768 + 96 * 128

K1 = NAME + "_kernel"
txt = f"""; generated by gen2.py
; @launch grid=(256,1,1) block=(256,1,1) lds=163840
.amdgcn_target "amdgcn-amd-amdhsa--gfx950"
.text
.globl {K1}
.p2align 8
.type {K1},@function
{K1}:
{g.text()}
.fill 3072, 4, 0xBF800000
.section .rodata,"a"
.p2align 6
.amdhsa_kernel {K1}
  .amdhsa_next_free_vgpr {256+232}
  .amdhsa_next_free_sgpr 102
  .amdhsa_accum_offset 256
  .amdhsa_group_segment_fixed_size 0
  .amdhsa_kernarg_size 104
  .amdhsa_user_sgpr_count 2
  .amdhsa_user_sgpr_kernarg_segment_ptr 1
  .amdhsa_system_sgpr_workgroup_id_x 1
.end_amdhsa_kernel
"""
open(out_path, 'w').write(txt)
```

```python
import re

def regs(spec):
    spec = spec.strip()
    if spec.startswith('-'): spec = spec[1:]
    m = re.fullmatch(r'([vas])\[(\d+):(\d+)\]', spec)
    if m: return [f"{m.group(1)}{i}" for i in range(int(m.group(2)), int(m.group(3)) + 1)]
    m = re.fullmatch(r'([vas])(\d+)', spec)
    if m: return [spec]
    if spec in ('vcc', 'exec', 'm0', 'scc'): return [spec]
    return []

def R(kind, base, n=1):
    return f"{kind}{base}" if n == 1 else f"{kind}[{base}:{base+n-1}]"

class I:
    __slots__ = ('text', 'cls', 'rd', 'wr', 'srcc', 'tag', 'cnt', 'sub', 'nstates')
    def __init__(self, text, cls, rd=(), wr=(), srcc=(), tag=None, cnt=None, sub=None, nstates=1):
        self.text = text; self.cls = cls; self.rd = set(rd); self.wr = set(wr); self.srcc = tuple(srcc)
        self.tag = tag; self.cnt = cnt; self.sub = sub; self.nstates = nstates

TRANS = ('v_exp_f32', 'v_rcp_f32', 'v_log_f32', 'v_rsq_f32', 'v_sqrt_f32')

def valu(op, dst, *srcs, extra=''):
    rd = []
    for s in srcs: rd += regs(s)
    wr = regs(dst)
    sub = None
    if op in TRANS: sub = 'trans'
    if op.startswith('v_permlane'):
        sub = 'permlane'; rd += wr; wr = wr + regs(srcs[0])
    if op.startswith('v_readfirstlane') or op.startswith('v_readlane'): sub = 'readlane'
    if op.startswith('v_fmac'): rd += wr
    if op.startswith('v_cndmask') and len(srcs) == 2: rd.append('vcc')
    return I(f"{op} {', '.join([dst] + list(srcs))}{extra}", 'valu', rd, wr, sub=sub)

def mfma(d, a, b, c, shape='16x16x32'):
    rc = regs(c)
    return I(f"v_mfma_f32_{shape}_bf16 {d}, {a}, {b}, {c}", 'mfma', regs(a) + regs(b) + rc, regs(d), srcc=rc)

def salu(op, dst, *srcs):
    rd = []
    for s in srcs: rd += regs(s)
    wr = regs(dst)
    if op.startswith('s_cmp'):
        rd += wr; wr = []
    return I(f"{op} {', '.join([dst] + list(srcs))}", 'salu', rd, wr)

def raw(text, cls='other', rd=(), wr=()):
    return I(text, cls, rd, wr)

def bload(dst, voff, srd, soff, off=0, tag=None, width=None, flags=''):
    n = len(regs(dst))
    op = {1: 'buffer_load_dword', 2: 'buffer_load_dwordx2', 4: 'buffer_load_dwordx4'}[n]
    o = f" offset:{off}" if off else ''
    return I(f"{op} {dst}, {voff}, {srd}, {soff} offen{o}{flags}", 'vmem', regs(voff) + regs(srd) + regs(soff), regs(dst), tag=tag, cnt='vm')

def bload_lds(voff, srd, soff, off=0, tag=None, flags=''):
    o = f" offset:{off}" if off else ''
    return I(f"buffer_load_dwordx4 {voff}, {srd}, {soff} offen{o}{flags} lds", 'vmem', regs(voff) + regs(srd) + regs(soff) + ['m0'], [], tag=tag, cnt='vm', sub='ldsdma')

def bstore(src, voff, srd, soff, off=0, tag=None, flags='', op=None):
    n = len(regs(src))
    op = op or {1: 'buffer_store_dword', 2: 'buffer_store_dwordx2', 4: 'buffer_store_dwordx4'}[n]
    o = f" offset:{off}" if off else ''
    return I(f"{op} {src}, {voff}, {srd}, {soff} offen{o}{flags}", 'vmem', regs(src) + regs(voff) + regs(srd) + regs(soff), [], tag=tag, cnt='vm',
             sub='widestore' if n >= 3 else 'store', srcc=regs(src))

def dsread(dst, addr, off=0, tag=None, op=None):
    n = len(regs(dst))
    op = op or {1: 'ds_read_b32', 2: 'ds_read_b64', 4: 'ds_read_b128'}[n]
    o = f" offset:{off}" if off else ''
    assert off < 65536
    return I(f"{op} {dst}, {addr}{o}", 'ds', regs(addr), regs(dst), tag=tag, cnt='lgkm')

def dswrite(addr, src, off=0, tag=None):
    n = len(regs(src))
    op = {1: 'ds_write_b32', 2: 'ds_write_b64', 4: 'ds_write_b128'}[n]
    o = f" offset:{off}" if off else ''
    assert off < 65536
    return I(f"{op} {addr}, {src}{o}", 'ds', regs(addr) + regs(src), [], tag=tag, cnt='lgkm')

class Wait:
    def __init__(self, *tags, vm0=False, lgkm0=False, cd=None):
        self.tags = tags; self.vm0 = vm0; self.lgkm0 = lgkm0; self.cd = cd

class Mark:
    def __init__(self, tag): self.tag = tag
class Label:
    def __init__(self, name): self.name = name

class Gen:
    def __init__(self):
        self.out = []
        self.vm = []
        self.lg = []
        self.vm_done = 0
        self.lg_done = 0
        self.hist = []
        self.pending = {}
        self.nnop = 0
        self.check_pending = True
        self.marks = {}
        self.autowait = False
        self.nlab = 0
    def label(self, name):
        self.out.append(name + ':')
    def barrier_hist(self):
        self.emit(I('s_nop 7', 'nop', nstates=8)); self.emit(I('s_nop 3', 'nop', nstates=4))
    def need(self, ins):
        need = 0
        dist = 0
        for p in reversed(self.hist):
            if dist >= 12: break
            req = 0
            if p.cls == 'valu':
                if ins.cls == 'mfma' and (p.wr & ins.rd): req = max(req, 2)
                if ins.cls == 'valu':
                    if p.sub == 'trans' and ins.sub != 'trans' and (p.wr & ins.rd): req = max(req, 1)
                    if p.sub == 'trans' and ins.sub == 'trans' and (p.wr & ins.rd): req = max(req, 1)
                    if ins.sub == 'permlane' and (p.wr & ins.rd): req = max(req, 2)
                    if ins.sub == 'readlane' and (p.wr & ins.rd): req = max(req, 1)
                    sw = {r for r in p.wr if r[0] == 's' or r == 'vcc'}
                    if sw & ins.rd: req = max(req, 2)
                    if 'exec' in p.wr: req = max(req, 4)
                if ins.cls == 'vmem':
                    sw = {r for r in p.wr if r[0] == 's'}
                    if sw & ins.rd: req = max(req, 5)
                if ins.cls == 'salu':
                    sw = {r for r in p.wr if r[0] == 's' or r == 'vcc'}
                    if sw & ins.rd: req = max(req, 2)
            elif p.cls == 'mfma':
                if ins.cls == 'mfma':
                    ab = ins.rd - set(ins.srcc)
                    if p.wr & ab: req = max(req, 8)
                    if p.wr & set(ins.srcc):
                        if set(ins.srcc) != p.wr: req = max(req, 6)
                    elif p.wr & ins.wr: req = max(req, 6)
                elif ins.cls in ('valu', 'vmem', 'ds'):
                    if p.wr & (ins.rd | ins.wr): req = max(req, 8)
                    if ins.cls == 'valu' and (set(p.srcc) & ins.wr): req = max(req, 3)
                    if ins.cls in ('vmem', 'ds') and (set(p.rd) & ins.wr): req = max(req, 0)
            elif p.cls == 'salu':
                if 'm0' in p.wr and 'm0' in ins.rd: req = max(req, 1)
            elif p.cls == 'vmem' and p.sub == 'widestore':
                if set(p.srcc) & ins.wr: req = max(req, 2)
            if req - dist > need: need = req - dist
            dist += p.nstates
        return need
    def emit(self, ins):
        if isinstance(ins, (list, tuple)):
            for x in ins: self.emit(x)
            return
        if isinstance(ins, Wait):
            self.wait(ins); return
        if isinstance(ins, Mark):
            self.marks[ins.tag] = len(self.vm); return
        if isinstance(ins, Label):
            self.label(ins.name); return
        if isinstance(ins, str):
            ins = raw(ins)
        if self.check_pending:
            for r in (ins.rd | ins.wr):
                if r in self.pending:
                    cnt, idx = self.pending[r]
                    done = self.vm_done if cnt == 'vm' else self.lg_done
                    if idx >= done:
                        if not self.autowait:
                            raise RuntimeError(f"register {r} used by '{ins.text}' while load outstanding ({cnt} #{idx})")
                        lst = self.vm if cnt == 'vm' else self.lg
                        mi = max(self.pending[q][1] for q in (ins.rd | ins.wr) if q in self.pending and self.pending[q][0] == cnt)
                        n = min(len(lst) - 1 - mi, 63 if cnt == 'vm' else 15)
                        w = I(f"s_waitcnt {'vmcnt' if cnt == 'vm' else 'lgkmcnt'}({n})", 'wait')
                        self.out.append(w); self.hist.append(w)
                        if cnt == 'vm': self.vm_done = max(self.vm_done, len(lst) - n)
                        else: self.lg_done = max(self.lg_done, len(lst) - n)
                    del self.pending[r]
        n = self.need(ins)
        while n > 0:
            k = min(n, 16)
            nop = I(f"s_nop {k-1}", 'nop', nstates=k)
            self.out.append(nop); self.hist.append(nop); self.nnop += 1
            n -= k
        self.out.append(ins); self.hist.append(ins)
        if len(self.hist) > 32: self.hist = self.hist[-16:]
        if ins.cnt == 'vm':
            self.vm.append(ins.tag)
            for r in ins.wr:
                if r[0] in 'va': self.pending[r] = ('vm', len(self.vm) - 1)
        elif ins.cnt == 'lgkm':
            self.lg.append(ins.tag)
            for r in ins.wr: self.pending[r] = ('lgkm', len(self.lg) - 1)
    def wait(self, w):
        parts = []
        vi = max([i for i, t in enumerate(self.vm) if t in w.tags], default=-1)
        li = max([i for i, t in enumerate(self.lg) if t in w.tags], default=-1)
        if w.vm0: vi = len(self.vm) - 1
        if w.lgkm0: li = len(self.lg) - 1
        force = False
        for t in w.tags:
            if t in self.marks:
                vi = max(vi, self.marks[t] - 1); force = True
            assert t in self.vm or t in self.lg or t in self.marks, f"unknown tag {t}"
        if w.cd is not None:
            sreg, extra = w.cd
            n = len(self.vm) - 1 - vi
            assert n + extra <= 63
            k = self.nlab; self.nlab += 1
            for x in (I(f"s_cmp_eq_u32 {sreg}, 0", 'salu'), I(f"s_cbranch_scc1 L_cda{k}", 'salu'), I(f"s_sub_u32 {sreg}, {sreg}, 1", 'salu'),
                      I(f"s_waitcnt vmcnt({n+extra})", 'wait'), I(f"s_branch L_cdb{k}", 'salu'), f"L_cda{k}:", I(f"s_waitcnt vmcnt({n})", 'wait'), f"L_cdb{k}:"):
                self.out.append(x)
            self.hist.append(I("s_nop 0", 'nop', nstates=3))
            self.vm_done = max(self.vm_done, len(self.vm) - n)
            return
        if vi >= self.vm_done or w.vm0 or force:
            n = min(len(self.vm) - 1 - vi, 63)
            parts.append(f"vmcnt({n})"); self.vm_done = max(self.vm_done, len(self.vm) - n)
        if li >= self.lg_done or w.lgkm0:
            n = min(len(self.lg) - 1 - li, 15)
            parts.append(f"lgkmcnt({n})"); self.lg_done = max(self.lg_done, len(self.lg) - n)
        if parts:
            ins = I("s_waitcnt " + " ".join(parts), 'wait')
            self.out.append(ins); self.hist.append(ins)
    def text(self):
        return "\n".join((x if isinstance(x, str) else "    " + x.text) for x in self.out) + "\n"

def interleave(main, fill, per=2, start=0):
    out = []; fill = list(fill)
    for k, m in enumerate(main):
        out.append(m)
        if k >= start:
            for _ in range(per):
                if fill: out.append(fill.pop(0))
    out += fill
    return out

import subprocess, tempfile, os
def sizes_of(lines):
    src = '.amdgcn_target "amdgcn-amd-amdhsa--gfx950"\n.text\n' + "\n".join(lines) + "\n"
    with tempfile.TemporaryDirectory() as d:
        open(d + "/a.s", "w").write(src)
        r = subprocess.run(["clang", "-x", "assembler", "-target", "amdgcn-amd-amdhsa", "-mcpu=gfx950", "-c", d + "/a.s", "-o", d + "/a.o"], capture_output=True, text=True)
        if r.returncode: raise RuntimeError(r.stderr[:3000])
        o = subprocess.run(["llvm-objdump", "-d", "--mcpu=gfx950", d + "/a.o"], capture_output=True, text=True).stdout
    sz = []
    for l in o.split("\n"):
        m = re.search(r"//\s*[0-9A-F]{12}:((?: [0-9A-F]{8})+)", l)
        if m: sz.append(4 * len(m.group(1).split()))
    return sz

WIDEN = ('v_add_f32', 'v_mul_f32', 'v_max_f32', 'v_mov_b32', 'v_exp_f32', 'v_rcp_f32', 'v_add_u32', 'v_xor_b32', 'v_and_b32',
         'v_lshlrev_b32', 'v_lshrrev_b32', 'v_sub_f32', 'v_or_b32', 'v_min_u32', 'v_max_u32')
def align8(g, verbose=True):
    lines = [(x if isinstance(x, str) else x.text) for x in g.out]
    sz = sizes_of(lines)
    insts = [x for x in g.out if not isinstance(x, str)]
    assert len(sz) == len(insts), (len(sz), len(insts))
    it = iter(sz)
    out = []; off = 0; cand = None; nw = nn = 0
    for x in g.out:
        if isinstance(x, str):
            out.append(x); continue
        s = next(it)
        if s == 8 and off % 8 == 4:
            if cand is not None:
                op, rest = cand.text.split(' ', 1)
                cand.text = op + '_e64 ' + rest; nw += 1
            else:
                out.append(I('s_nop 0', 'nop')); nn += 1
            off += 4
        if s == 8: cand = None
        elif s == 4 and off % 8 == 0 and x.cls == 'valu' and x.text.split(' ')[0] in WIDEN and not x.text.endswith('_dpp'): cand = x
        out.append(x); off += s
    g.out = out
    if verbose: print(f"align8: widened {nw}, nops {nn}, code bytes {off}")
    return off


def _cost(x):
    if isinstance(x, (Wait, Mark)): return 4
    if x.cls == 'mfma': return 8
    if x.cls == 'valu' and x.sub == 'trans': return 8
    return 4
def _lat(p, c, kind):
    if kind == 'raw':
        if p.cls == 'mfma':
            if c.cls == 'mfma' and set(c.srcc) == p.wr and not (p.wr & (c.rd - set(c.srcc))): return 16
            return 44
        if p.cls == 'ds': return 130
        if p.cls == 'vmem': return 600 if any(r[0] in 'va' for r in p.wr) else 4
        if p.cls == 'valu':
            if c.cls == 'mfma': return 12
            if c.cls == 'valu' and c.sub == 'permlane': return 12
            if p.sub == 'trans': return 12
            if c.cls in ('vmem', 'salu') and any(r[0] == 's' for r in p.wr): return 24
            return 4
        if p.cls == 'salu' and 'm0' in p.wr: return 8
        return 4
    if kind == 'waw':
        if p.cls == 'mfma': return 44
        return 4
    if p.cls == 'mfma' and c.cls == 'valu' and (set(p.srcc) & c.wr): return 20
    if p.cls == 'vmem' and p.sub == 'widestore': return 12
    return 4 if p.cls != 'mfma' else 8

def schedule(seq, earliest=None, verbose=None):
    seq = [x for x in seq]
    n = len(seq)
    nodes = []
    for x in seq:
        if isinstance(x, Wait):
            y = I('WAIT', 'wait', rd=getattr(x, 'rd', ()), wr=getattr(x, 'wr', ())); y.tag = x
            nodes.append(y)
        else: nodes.append(x)
    preds = [[] for _ in range(n)]; succs = [[] for _ in range(n)]
    lastw = {}; readers = {}; lastmem = {}
    def edge(a, b, l):
        preds[b].append((a, l)); succs[a].append((b, l))
    for i, x in enumerate(nodes):
        rd = set(x.rd); wr = set(x.wr)
        if x.cls == 'salu': wr = wr | {'scc_'}
        for r in rd:
            if r in lastw: edge(lastw[r], i, _lat(nodes[lastw[r]], x, 'raw'))
        for r in wr:
            if r in lastw: edge(lastw[r], i, _lat(nodes[lastw[r]], x, 'waw'))
            for j in readers.get(r, []):
                if j != i: edge(j, i, _lat(nodes[j], x, 'war'))
        for r in rd: readers.setdefault(r, []).append(i)
        for r in wr: lastw[r] = i; readers[r] = []
        key = x.cnt if x.cnt else None
        if key:
            if key in lastmem: edge(lastmem[key], i, getattr(x, 'gap', 4) if False else 4)
            lastmem[key] = i
    prio = [0] * n
    for i in range(n - 1, -1, -1):
        prio[i] = _cost(nodes[i]) + max([l - _cost(nodes[i]) + prio[j] for j, l in succs[i]], default=0)
    npred = [len(p) for p in preds]
    ready_t = [0] * n
    if earliest:
        for i, x in enumerate(seq):
            ready_t[i] = earliest(x) or 0
    avail = [i for i in range(n) if npred[i] == 0]
    t = 0; pipe = 0; out = []
    while avail:
        cand = [i for i in avail if ready_t[i] <= t and (nodes[i].cls != 'mfma' or pipe <= t)]
        if not cand:
            t = min(max(ready_t[i], pipe if nodes[i].cls == 'mfma' else 0) for i in avail)
            continue
        mf = [i for i in cand if nodes[i].cls == 'mfma'] or [i for i in cand if nodes[i].cls == 'vmem' or (nodes[i].cls == 'salu' and ready_t[i] > 0 and earliest and earliest(seq[i]))]
        i = max(mf or cand, key=lambda k: (prio[k], -k))
        avail.remove(i); out.append(seq[i])
        if nodes[i].cls == 'mfma': pipe = t + 16
        for j, l in succs[i]:
            ready_t[j] = max(ready_t[j], t + l); npred[j] -= 1
            if npred[j] == 0: avail.append(j)
        t += _cost(nodes[i])
    if verbose: print(f"schedule[{verbose}]: {n} instrs, est {t} cycles")
    return out
```

```python
import sys, math, struct
from fw import *

NAME = "concat_heads__gqa_block_cached__gqa_block_cached__near_ridge"
STAMP = '--stamp' in sys.argv
def opt(name, default):
    for a in sys.argv:
        if a.startswith(f'--{name}='): return int(a.split('=')[1])
    return default
ROTMASK = opt('rotmask', 15)
NCLS = opt('ncls', 8)
KSP = opt('ksp', 1)
K0 = opt('k0', -1)
CLRD = opt('clrd', 2)
KREAD = opt('kread', 9)
V0 = 99; VSP = 0
VQ13 = opt('vq13', 2)
WB = opt('wb', 2)
PFCODE = opt('pfcode', 1); NOCLR = 1
NT = ' nt' if opt('nt', 1) else ''
STEPS = 'Q' if '--stepsQ' in sys.argv else ('O' if '--stepsO' in sys.argv else None)
out_path = sys.argv[1]

g = Gen()
E = g.emit
sX, sK, sV, sWQ, sWO, sWS, sOUT, sDBG = 's[4:7]', 's[8:11]', 's[12:15]', 's[16:19]', 's[20:23]', 's[24:27]', 's[28:31]', 's[32:35]'
sP, sB, sHG, sW, sH, sROT = 's36', 's37', 's38', 's39', 's40', 's41'
sSEL = ['s42', 's43']; sC = 's44'
sKV = 's45'; sXB = 's46'
sT0, sT1, sT2, sT3 = 's47', 's48', 's49', 's50'
sWoff = 's51'; sWbase = 's52'; sVL = 's53'; sXM = 's54'
sGRP = 's55'; sIN = 's56'; sMASK = 's57'; sCNT = 's58'; sOUTB = 's59'; sPUB = 's60'; sCLS = 's61'; sCD = 's62'; sDONE = 's63'; sFL = 's3'; sFLG = 's100'
vL16, vBF, vBFr, vBc, vXs, vVs0, vVtr = 'v1', 'v2', 'v3', 'v4', 'v5', 'v6', 'v7'
vW = [f'v{8+j}' for j in range(8)]
RING, RN = 16, 3
PB = 112; ACC = 120; TMP = 248
vCol, vG = f'v{TMP+7}', f'v{TMP+6}'
vKs = [f'v{TMP+k}' for k in range(4)]
vVs1 = f'v{TMP+4}'; vKr = f'v{TMP+5}'
def acc(i, t): return R('v', ACC + (t * 8 + i) * 4, 4) if t < 4 else R('a', i * 4, 4)
def accr(i, t, r): return f'v{ACC + (t*8+i)*4 + r}' if t < 4 else f'a{i*4+r}'
XF, KF, VF, AONE = 32, 72, 152, 232
XLDS, VLDS = 0, 81920
INBOX = 1 << 20; FLAGS = 1 << 19
T = PB

stamp_n = [0]
def sstamp(ph):
    if STEPS != ph: return
    k = stamp_n[0]; stamp_n[0] += 1
    E(raw(f"s_memtime s[{64+2*k}:{65+2*k}]"))
def stamp():
    if not STAMP or STEPS: return
    k = stamp_n[0]; stamp_n[0] += 1
    E(raw("s_memrealtime s[96:97]")); E(raw("s_memtime s[98:99]")); E(raw("s_waitcnt lgkmcnt(0)"))
    g.lg_done = len(g.lg)
    E(raw(f"s_mov_b32 s{64+2*k}, s96")); E(raw(f"s_mov_b32 s{65+2*k}, s98"))
def flat(L):
    o = []
    for x in L:
        if isinstance(x, (list, tuple)): o += flat(x)
        else: o.append(x)
    return o
def flat1(L): return [y for x in L for y in x]
def split(L, n=3): return [L[k:k+n] for k in range(0, len(L), n)]
def weave(a, b):
    out = []; nb = len(b); na = len(a); j = 0
    for k, x in enumerate(a):
        while j < nb and j * na <= k * nb:
            out.append(b[j]); j += 1
        out.append(x)
    out += b[j:]
    return out

E(raw("s_cmp_ge_u32 s2, 256")); E(raw("s_cbranch_scc1 L_end"))
if STAMP: E(raw("s_memrealtime s[96:97]")); E(raw("s_memtime s[98:99]"))
E(raw("s_load_dwordx16 s[64:79], s[0:1], 0"))
E(raw("s_load_dwordx8 s[80:87], s[0:1], 64"))
E(raw("s_load_dwordx2 s[88:89], s[0:1], 96"))
if PFCODE:
    E(raw("s_getpc_b64 s[90:91]", wr=['s90', 's91']))
    E(valu('v_lshlrev_b32', 'v8', '7', 'v0'))
    E(valu('v_mov_b32', 'v9', 's91'))
    E(raw("v_add_co_u32 v8, vcc, s90, v8", cls='valu', rd=['s90', 'v8'], wr=['v8', 'vcc']))
    E(raw("v_addc_co_u32 v9, vcc, 0, v9, vcc", cls='valu', rd=['v9', 'vcc'], wr=['v9', 'vcc']))
    E(I("global_load_dword v112, v[8:9], off", 'vmem', ['v8', 'v9'], ['v112'], tag='PF', cnt='vm'))
    E(raw("v_add_co_u32 v8, vcc, 0x8000, v8", cls='valu', rd=['v8'], wr=['v8', 'vcc']))
    E(raw("v_addc_co_u32 v9, vcc, 0, v9, vcc", cls='valu', rd=['v9', 'vcc'], wr=['v9', 'vcc']))
    E(raw("v_cmp_gt_u32 vcc, 128, v0", cls='valu', rd=['v0'], wr=['vcc']))
    E(raw("s_nop 1")); E(raw("s_and_saveexec_b64 s[92:93], vcc")); E(raw("s_cbranch_execz L_pf"))
    E(raw("global_load_dword v113, v[8:9], off"))
    g.label('L_pf')
    E(raw("s_mov_b64 exec, s[92:93]"))
E(salu('s_and_b32', sP, 's2', '1'))
E(salu('s_lshr_b32', sT0, 's2', '1')); E(salu('s_and_b32', sT0, sT0, '3'))
E(salu('s_lshr_b32', sT1, 's2', '3'))
E(salu('s_and_b32', sT2, sT1, '1'))
E(salu('s_lshl_b32', sHG, sT0, '1')); E(salu('s_add_u32', sHG, sHG, sT2))
E(salu('s_lshr_b32', sB, sT1, '1'))
E(valu('v_lshrrev_b32', 'v8', '6', 'v0'))
E(valu('v_and_b32', 'v0', '63', 'v0'))
E(valu('v_readfirstlane_b32', sW, 'v8'))
E(valu('v_lshrrev_b32', vG, '4', 'v0'))
E(valu('v_and_b32', 'v10', '15', 'v0'))
E(valu('v_lshlrev_b32', vL16, '4', 'v0'))
E(valu('v_xor_b32', 'v11', 'v10', vG))
E(valu('v_lshlrev_b32', 'v11', '4', 'v11'))
E(valu('v_lshl_add_u32', vBF, 'v10', '8', 'v11'))
E(salu('s_and_b32', sROT, sB, str(ROTMASK)))
E(salu('s_and_b32', sT0, sROT, '3')); E(salu('s_lshl_b32', sT0, sT0, '6'))
E(valu('v_xor_b32', vBFr, sT0, vBF))
E(valu('v_lshl_add_u32', vXs, vG, '10', 'v11'))
E(salu('s_mul_i32', sT0, sW, str(4096 + 64)))
E(valu('v_xor_b32', vXs, sT0, vXs))
E(valu('v_lshlrev_b32', vCol, '4', 'v10'))
E(salu('s_lshl_b32', sH, sHG, '2')); E(salu('s_add_u32', sH, sH, sW))
E(salu('s_mul_i32', sXB, sB, '81920'))
E(salu('s_lshr_b32', sT0, sROT, '2')); E(salu('s_lshl_b32', sT0, sT0, '8')); E(salu('s_add_u32', sXB, sXB, sT0))
E(salu('s_lshl_b32', sXM, sW, '10'))
E(salu('s_lshl_b32', sWbase, sH, '8')); E(salu('s_lshl_b32', sT0, sROT, '18')); E(salu('s_add_u32', sWbase, sWbase, sT0))
late = []
A = late.append
t12, t13, c_ = 'v114', 'v115', 'v116'
A(valu('v_and_b32', c_, '15', 'v0'))
A(valu('v_lshlrev_b32', t12, '2', vG)); A(valu('v_xor_b32', t12, t12, c_)); A(valu('v_lshlrev_b32', t12, '4', t12))
A(valu('v_lshl_add_u32', vKs[0], vG, '8', t12))
for v in range(1, 4): A(valu('v_xor_b32', vKs[v], str(v * 16), vKs[0]))
A(valu('v_and_b32', t12, '3', c_)); A(valu('v_xor_b32', t12, t12, vG)); A(valu('v_lshrrev_b32', t13, '2', c_))
A(valu('v_lshl_add_u32', t12, t12, '2', t13)); A(valu('v_lshlrev_b32', t12, '4', t12)); A(valu('v_lshl_add_u32', vKr, c_, '8', t12))
A(valu('v_lshrrev_b32', t12, '1', c_)); A(valu('v_xor_b32', t12, t12, vG)); A(valu('v_lshlrev_b32', t12, '5', t12))
A(valu('v_and_b32', t13, '1', c_)); A(valu('v_lshl_add_u32', t12, t13, '4', t12)); A(valu('v_lshl_add_u32', vVs0, vG, '8', t12))
A(valu('v_xor_b32', vVs1, '128', vVs0))
A(valu('v_lshrrev_b32', t12, '2', 'v0')); A(valu('v_and_b32', t13, '7', t12)); A(valu('v_lshlrev_b32', t13, '5', t13))
A(valu('v_lshl_add_u32', t13, t12, '8', t13)); A(valu('v_and_b32', t12, '3', 'v0')); A(valu('v_lshl_add_u32', vVtr, t12, '3', t13))
A(salu('s_mov_b32', sSEL[0], '0x05040100')); A(salu('s_mov_b32', sSEL[1], '0x07060302'))
cval = (128 ** -0.5) * math.log2(math.e)
A(salu('s_mov_b32', sC, hex(struct.unpack('<I', struct.pack('<f', cval))[0])))
A(salu('s_lshl_b32', sKV, sB, '5')); A(salu('s_add_u32', sKV, sKV, sH)); A(salu('s_mul_i32', sKV, sKV, '20480'))
A(salu('s_mul_i32', sVL, sW, '20480')); A(salu('s_add_u32', sVL, sVL, str(VLDS)))
A(valu('v_add_u32', vVtr, sVL, vVtr)); A(valu('v_add_u32', vKr, sVL, vKr))
A(salu('s_lshl_b32', sGRP, sP, '4')); A(salu('s_add_u32', sGRP, sGRP, sB))
A(salu('s_and_b32', sCLS, sB, str(NCLS - 1))); A(salu('s_mov_b32', sCD, '0'))
A(salu('s_lshl_b32', sIN, sGRP, '3')); A(salu('s_add_u32', sIN, sIN, sHG)); A(salu('s_lshl_b32', sIN, sIN, '2')); A(salu('s_add_u32', sIN, sIN, sW))
A(salu('s_mul_i32', sIN, sIN, '20480')); A(salu('s_add_u32', sIN, sIN, str(INBOX)))
A(salu('s_lshl_b32', sFL, sGRP, '2')); A(salu('s_add_u32', sFL, sFL, sW))
A(salu('s_lshl_b32', sFLG, sFL, '8')); A(salu('s_add_u32', sFLG, sFLG, str(FLAGS)))
A(valu('v_mov_b32', t12, '0')); A(valu('v_lshlrev_b32', t13, '2', 'v0'))
A(raw(f"s_cmp_lg_u32 {sHG}, 0")); A(raw("s_cbranch_scc1 L_nc"))
A(raw(f"buffer_store_dword {t12}, {t13}, {sWS}, {sFLG} offen sc1"))
A(Label('L_nc'))
E(valu('v_lshl_add_u32', vW[0], vG, '16', vCol))
for j in range(1, 8): E(valu('v_add_u32', vW[j], str(8192 * j), vW[0]))
E(raw("s_waitcnt lgkmcnt(0)"))
E(raw(f"s_cmp_eq_u32 {sP}, 0"))
def srd(base, pa, pb, size):
    E(raw(f"s_cselect_b32 s{base}, s{pa}, s{pb}")); E(raw(f"s_cselect_b32 s{base+1}, s{pa+1}, s{pb+1}"))
    E(raw(f"s_mov_b32 s{base+2}, {size}")); E(raw(f"s_mov_b32 s{base+3}, 0x00020000"))
srd(4, 64, 74, 1310720); srd(16, 70, 80, 4194304)

def xdma(n):
    L = [salu('s_xor_b32', sT0, sXB, str(n * 256))]
    for t in range(5):
        L.append(salu('s_add_u32', 'm0', sXM, str(XLDS + n * 20480 + t * 4096)))
        L.append(salu('s_add_u32', sT2, sT0, str(t * 16384)))
        L.append(bload_lds(vXs, sX, sT2, tag=f'X{n}'))
    return L
def wq_soff(i): return [salu('s_xor_b32', sWoff, sWbase, str(i << 18))]
def wq_load(i, j): return bload(R('v', RING + (i % RN) * 32 + j * 4, 4), vW[j], sWQ, sWoff, tag=f'Q{i}')
def wo_soff(i): return [salu('s_xor_b32', sWoff, sWbase, str(i << 15))]
def wo_load(i, j): return bload(R('v', RING + (i % RN) * 32 + j * 4, 4), vW[j >> 2], sWO, sWoff, off=(j & 3) * 1024, tag=f'O{i}')
def kvquad(kind, u):
    srd_ = sK if kind == 'K' else sV
    L = [salu('s_add_u32', sT3, sKV, str(u * 4096)), salu('s_add_u32', 'm0', sVL, str(u * 4096))]
    for v in range(4):
        va = vKs[v] if kind == 'K' else (vVs1 if v & 1 else vVs0)
        L.append(bload_lds(va, srd_, sT3, off=v * 1024, flags=NT))
    return L
def clear():
    L = []
    for t in range(5):
        L.append(salu('s_add_u32', sT1, sIN, str(t * 4096)))
        for k in range(4): L.append(bstore(R('a', AONE, 4), vL16, sWS, sT1, off=k * 1024, flags=' sc1'))
    return L
OOL = []
def site(kind, cls, cd=2):
    if cls < 0 or cls >= NCLS: return []
    name = f'{kind}{cls}'
    h = Gen(); h.check_pending = False
    h.label(f'L_o{name}')
    h.emit(clear() if kind == 'C' else flat([kvquad(kind, u) for u in range(5)]))
    h.emit(raw(f's_mov_b32 {sCD}, {cd}')); h.emit(raw(f's_branch L_r{name}'))
    OOL.extend(h.out)
    return [raw(f's_cmp_eq_u32 {sCLS}, {cls}'), raw(f's_cbranch_scc1 L_o{name}'), Label(f'L_r{name}')]
def sites_at(i, cd=2):
    L = []
    for c in range(NCLS):
        if K0 + c * KSP == i: L += site('K', c, cd)
        if K0 + c * KSP + CLRD == i and not NOCLR: L += site('C', c, cd)
        if V0 + c * VSP == i: L += site('V', c, cd)
    return L
def kreads():
    L = []
    for r in range(4):
        grp = [valu('v_xor_b32', vKs[r], str(r * 16), vKr)]
        for u in range(5):
            grp.append(dsread(R('a', KF + (u * 4 + r) * 4, 4), vKs[r], u * 4096, tag='KF'))
            L.append(grp); grp = []
    return L
def baddr(i): return valu('v_xor_b32', vBc, str(XLDS + (i & 3) * 64 + (i >> 2) * 20480), vBFr)
def bfrag(i, t): return R('a', XF + (i % 2) * 20 + t * 4, 4)
def bfrag_read(ph, i, t): return dsread(bfrag(i, t), vBc, t * 4096, tag=f'{ph}B{i}')
def perm(i, tile, q, dst=None):
    lo = RING + (i % RN) * 32 + (2 * q) * 4 + (tile >> 1)
    d = PB + (tile % 2) * 4 + q if dst is None else dst + tile * 4 + q
    return valu('v_perm_b32', f'v{d}', f'v{lo+4}', f'v{lo}', sSEL[tile % 2])

def gemm(ph, soff_f, load_f, extra, pre_issued, barrier_at, tail_fill, sites=None, ex13=(), ex14=(), ex15=()):
    cd = (sCD, 20) if sites else None
    def WW(i): return Wait(f'{ph}{i}', cd=cd)
    E(WW(0))
    for q in range(4): E(perm(0, 0, q))
    F14 = RING + (13 % RN) * 32
    ng = 8 // WB
    for i in range(14):
        sstamp(ph)
        ex = list(extra.get(i, []))
        for tile in range(8):
            fill = [[] for _ in range(5)]
            ni, nt = (i, tile + 1) if tile < 7 else (i + 1, 0)
            if ni < 14:
                if nt == 0: fill[0].append(WW(ni))
                fill[0] += [perm(ni, nt, 0), perm(ni, nt, 1)]
                fill[1] += [perm(ni, nt, 2), perm(ni, nt, 3)]
            li, gi = (i + RN, 0) if tile == 7 else (i - 1 + RN, tile + 1)
            if pre_issued <= li < 16 and gi < ng:
                if gi == 0: fill[2] += soff_f(li)
                for k in range(WB): fill[2 + (k * 2) // WB].append(load_f(li, gi * WB + k))
            if tile < 5:
                if tile == 0:
                    if barrier_at == i: fill[4].append(raw('s_barrier'))
                    fill[4].append(baddr(i + 1))
                fill[4].append(bfrag_read(ph, i + 1, tile))
            if sites and tile == ng - 1:
                st = sites(i)
                fill[2] += st
            if i == 13 and tile == ng - 1: ex += list(ex13)
            if ex:
                k = (len(ex) + (7 - tile)) // (8 - tile)
                for kk in range(k): fill[2 if kk < (k + 1) // 2 else 3] += ex.pop(0)
            if i == 13 and tile == 7:
                fill[0] += [WW(14)] + [perm(14, 0, q, F14) for q in range(2)]
                fill[1] += [perm(14, 0, q, F14) for q in range(2, 4)]
                fill[2] += [perm(14, 1, q, F14) for q in range(2)]
                fill[3] += [perm(14, 1, q, F14) for q in range(2, 4)]
                fill[4] += [perm(14, 2, q, F14) for q in range(2)]
            if tile == 0: E(Wait(f'{ph}B{i}'))
            for t in range(5):
                a_ = acc(tile, t)
                E(mfma(a_, R('v', PB + (tile % 2) * 4, 4), bfrag(i, t), '0' if i == 0 else a_))
                E(fill[t])
    F15 = RING + (14 % RN) * 32
    p14 = [perm(14, 2, q, F14) for q in range(2, 4)] + [perm(14, tl, q, F14) for tl in range(3, 8) for q in range(4)]
    p15 = [WW(15)] + [perm(15, tl, q, F15) for tl in range(8) for q in range(4)]
    b15 = [baddr(15)] + [bfrag_read(ph, 15, t) for t in range(5)]
    sstamp(ph)
    E(Wait(f'{ph}B14'))
    def M(i, tile, t):
        F = F14 if i == 14 else F15
        return mfma(acc(tile, t), R('v', F + tile * 4, 4), bfrag(i, t), acc(tile, t))
    seq1 = [M(14, tl, t) for tl in range(8) for t in range(3)]
    fill1 = b15[:3] + p14[:2] + b15[3:] + p14[2:] + list(ex14) + p15
    E(interleave(seq1, fill1[:48], per=2))
    rest = fill1[48:]
    E(Wait(f'{ph}B15'))
    E(interleave([M(14, tl, 3) for tl in range(8)], rest, per=2))
    order = [('a', 0), ('a', 1), ('b', 4), ('a', 2), ('a', 3), ('a', 4)]
    pend = list(ex15)
    for kind, t in order:
        seq = [M(15 if kind == 'a' else 14, tl, t) for tl in range(8)]
        E(interleave(seq, pend[:14], per=2, start=1)); pend = pend[14:]
        if kind == 'a': pend = pend + tail_fill(t)
    E(pend)
    sstamp(ph)

E(xdma(0))
E(wq_soff(0))
for j in range(8): E(wq_load(0, j))
E(wq_soff(1))
for j in range(8): E(wq_load(1, j))
E(raw(f"s_cmp_eq_u32 {sP}, 0"))
srd(8, 66, 76, 10485760); srd(12, 68, 78, 10485760); srd(20, 72, 82, 4194304)
srd(24, 88, 88, 268435456); srd(28, 84, 84, 2621440); srd(32, 86, 86, 256)
if STAMP and not STEPS:
    E(raw("s_mov_b32 s64, s96")); E(raw("s_mov_b32 s65, s98")); stamp_n[0] = 1
E(late)
E(baddr(0))
E(Wait('X0')); E(raw('s_barrier'))
for t in range(5): E(bfrag_read('Q', 0, t))
E(wq_soff(2))
for j in range(8): E(wq_load(2, j))
E(sites_at(-1, cd=3))
stamp()
extra = {i: [] for i in range(14)}
for n in (1, 2, 3):
    x = xdma(n); extra[0] += [x[:4]] + split(x[4:])
extra[KREAD] += kreads()
assert K0 + (NCLS - 1) * KSP + 3 <= KREAD and KREAD < 13
def vq(u):
    L = kvquad('V', u)
    for x in L:
        if x.cls == 'vmem': x.tag = 'V'
    return [L[:3]] + [[x] for x in L[3:]]
v13 = [[Wait('KF')]] + flat1([vq(u) for u in range(VQ13)])
vrest = [vq(u) for u in range(VQ13, 5)]

QF = [RING + 0, RING + 16, 120, 136, 152]
def cvt_unit(dst, t, r):
    L = []
    for m in range(4):
        if t < 4:
            L.append(valu('v_cvt_pk_bf16_f32', f'v{dst + m}', accr(2*m, t, r), accr(2*m+1, t, r)))
        else:
            t0, t1 = f'v{T + (m % 2) * 2}', f'v{T + (m % 2) * 2 + 1}'
            L.append(valu('v_accvgpr_read_b32', t0, accr(2*m, t, r)))
            L.append(valu('v_accvgpr_read_b32', t1, accr(2*m+1, t, r)))
            L.append(valu('v_cvt_pk_bf16_f32', f'v{dst + m}', t0, t1))
    return L
def cq(t): return flat([cvt_unit(QF[t] + r * 4, t, r) for r in range(4)])
gemm('Q', wq_soff, wq_load, extra, 3, 3, cq, sites=sites_at, ex13=v13, ex14=(vrest.pop(0) if vrest else []), ex15=(vrest.pop(0) if vrest else []))
stamp()
E(raw('s_barrier'))
E(valu('v_mov_b32', 'v10', '0')); E(valu('v_mov_b32', 'v11', '1'))
E(raw(f"s_cmp_lg_u32 {sHG}, 0")); E(raw("s_cbranch_scc1 L_nf"))
E(raw("s_mov_b64 exec, 1")); E(raw(f"buffer_store_byte v11, v10, {sDBG}, {sFL} offen sc1")); E(raw("s_mov_b64 exec, -1"))
g.label('L_nf')

wo_pre = [valu('v_lshl_add_u32', vW[0], vG, '12', vCol), valu('v_add_u32', vW[1], '16384', vW[0]),
          salu('s_lshl_b32', sWbase, sHG, '19'), salu('s_lshl_b32', sT0, sW, '8'), salu('s_add_u32', sWbase, sWbase, sT0),
          salu('s_lshl_b32', sT0, sROT, '15'), salu('s_add_u32', sWbase, sWbase, sT0)]
def wo_batch(i): return wo_soff(i) + [wo_load(i, j) for j in range(8)]

SB = [168, 188]
PF = [208, 218, 228, 238, 120]
def qk(t):
    L = []
    for r in range(4):
        for u in range(5):
            d = R('v', SB[t % 2] + u * 4, 4)
            L.append(mfma(d, R('a', KF + (u * 4 + r) * 4, 4), R('v', QF[t] + r * 4, 4), '0' if r == 0 else d))
    return L
def softmax(t):
    s = [f'v{SB[t % 2] + k}' for k in range(20)]
    tb = T + (t % 2) * 4
    m, t1, sm, sm2 = f'v{tb}', f'v{tb+1}', f'v{tb+2}', f'v{tb+3}'
    L = [valu('v_max3_f32', m, s[0], s[1], s[2]), valu('v_max3_f32', t1, s[3], s[4], s[5])]
    for k in range(6, 18, 4):
        L.append(valu('v_max3_f32', m, m, s[k], s[k+1])); L.append(valu('v_max3_f32', t1, t1, s[k+2], s[k+3]))
    L.append(valu('v_max3_f32', m, m, s[18], s[19]))
    L.append(valu('v_max_f32', m, m, t1))
    for op in ('v_permlane32_swap_b32', 'v_permlane16_swap_b32'):
        L.append(valu('v_mov_b32', t1, m)); L.append(valu(op, m, t1)); L.append(valu('v_max_f32', m, m, t1))
    L.append(valu('v_mul_f32', m, sC, m))
    for k in range(20): L.append(valu('v_fma_f32', s[k], s[k], sC, '-' + m))
    for k in range(20): L.append(valu('v_exp_f32', s[k], s[k]))
    L.append(valu('v_add_f32', sm, s[0], s[1])); L.append(valu('v_add_f32', sm2, s[2], s[3]))
    for k in range(4, 20, 2):
        L.append(valu('v_add_f32', sm, sm, s[k])); L.append(valu('v_add_f32', sm2, sm2, s[k+1]))
    L.append(valu('v_add_f32', sm, sm, sm2))
    for op in ('v_permlane32_swap_b32', 'v_permlane16_swap_b32'):
        L.append(valu('v_mov_b32', sm2, sm)); L.append(valu(op, sm, sm2)); L.append(valu('v_add_f32', sm, sm, sm2))
    L.append(valu('v_rcp_f32', sm, sm))
    for k in range(20): L.append(valu('v_mul_f32', s[k], s[k], sm))
    for k in range(10): L.append(valu('v_cvt_pk_bf16_f32', f'v{PF[t] + k}', s[2*k], s[2*k+1]))
    return L

VT = opt('vt', 3000); WT = [opt('wt1', 800), opt('wt2', 1800), opt('wt0', 2800)]
early = {}
def at(L, t0, dt=0):
    for k, x in enumerate(L): early[id(x)] = t0 + k * dt
    return L
vr = flat(vrest)
for x in vr:
    if x.cls == 'vmem': x.wr.add('Vq')
wV = Wait('V'); wV.rd = {'Vq'}; wV.wr = {'Vready'}; early[id(wV)] = VT
vTa = ['v13', 'v15']
def vreads():
    L = []
    for i in range(8):
        L.append(valu('v_xor_b32', vTa[i % 2], str(i * 32), vVtr))
        for u in range(5):
            d = dsread(R('a', VF + i * 10 + u * 2, 2), vTa[i % 2], u * 4096, tag='VF', op='ds_read_b64_tr_b16'); d.rd.add('Vready')
            L.append(d)
    return L
vOw = [f'v{TMP+y}' for y in range(4)]
osetup = [salu('s_lshr_b32', sT0, sROT, '2'), salu('s_xor_b32', sT0, sT0, sW), salu('s_mul_i32', sT0, sT0, '20480'), valu('v_add_u32', vOw[0], sT0, vBF)]
osetup += [valu('v_xor_b32', vOw[y], str(y * 64), vOw[0]) for y in range(1, 4)]
OB = [130, 146]
def pvh(t, hf):
    ob = OB[hf]
    L = []
    for z in range(3):
        for q in range(4):
            i = 4 * hf + q
            d = R('v', ob + q * 4, 4)
            if z < 2: L.append(mfma(d, R('a', VF + i * 10 + z * 4, 4), R('v', PF[t] + z * 4, 4), '0' if z == 0 else d))
            else: L.append(mfma(d, R('a', VF + i * 10 + 8, 2), R('v', PF[t] + 8, 2), d, shape='16x16x16'))
    for yy in range(2):
        b0 = ob + yy * 8
        for k in range(4): L.append(valu('v_cvt_pk_bf16_f32', f'v{b0+k}', f'v{b0+2*k}', f'v{b0+2*k+1}'))
        L.append(dswrite(vOw[2 * hf + yy], R('v', b0, 4), XLDS + t * 4096, tag='OW'))
    return L
vPub = 'v12'
pubsetup = [salu('s_mov_b32', sT2, '163840'), valu('v_mul_lo_u32', 'v14', vG, sT2), valu('v_add_u32', vPub, vCol, 'v14'),
            salu('s_mul_i32', sPUB, sGRP, '655360'), salu('s_mul_i32', sT2, sW, '20480'), salu('s_add_u32', sPUB, sPUB, sT2),
            salu('s_lshl_b32', sT2, sHG, '9'), salu('s_add_u32', sPUB, sPUB, sT2), salu('s_add_u32', sPUB, sPUB, str(INBOX))]
flagld = I(f'buffer_load_ubyte v14, v10, {sDBG}, {sFL} offen sc1', 'vmem', ['v10'], ['v14'], tag='FL', cnt='vm')
att = at(vr, 0, 40) + wo_pre + osetup + pubsetup + qk(0) + qk(1) + softmax(0) + at(wo_batch(1), WT[0], 40) + qk(2) + softmax(1) + at(wo_batch(2), WT[1], 40) \
    + qk(3) + softmax(2) + at(wo_batch(0), WT[2], 40) + qk(4) + [wV] + vreads() + softmax(3) + softmax(4) + at([flagld], VT + 1000)
for t in range(5): att += pvh(t, 0) + pvh(t, 1)
if opt('pure', 0):
    mem = [x for x in att if not isinstance(x, Wait) and (x.cls == 'vmem' or (x.cls == 'salu' and id(x) in early))]
    att = [x for x in att if x not in mem]
    E([x for x in mem if x in vr]); E(Wait('V')); stamp_n[0] -= 1; stamp()
    att += at([x for x in mem if x not in vr], 99999)
g.autowait = True
E(schedule(att, earliest=lambda x: early.get(id(x)), verbose='att'))
g.autowait = False
stamp()
E(baddr(0))
E(Wait('OW')); E(raw('s_barrier'))
for t in range(5): E(bfrag_read('O', 0, t))
stamp()
PUBR = RING + 0
pk = [0]
def publish(t):
    L = []
    for r in range(4):
        d = PUBR + (pk[0] % 8) * 4; pk[0] += 1
        L += cvt_unit(d, t, r)
        L.append(salu('s_add_u32', sT1, sPUB, str((r >> 1) * 81920 + (r & 1) * 256 + t * 4096)))
        L.append(bstore(R('v', d, 4), vPub, sWS, sT1, tag=f'PS{t}', flags=' sc1'))
    return L
vOut, vPoll, vTile = 'v13', 'v15', f'v{TMP}'; sMYF = 's101'
gsetup = [salu('s_mov_b32', sMASK, '0xffff0000'),
  valu('v_lshlrev_b32', vOut, '7', vCol), valu('v_and_b32', 'v11', '1', vG), valu('v_lshl_add_u32', vOut, 'v11', '4', vOut),
  valu('v_lshrrev_b32', 'v11', '1', vG), valu('v_lshl_add_u32', vOut, 'v11', '15', vOut),
  salu('s_mul_i32', sOUTB, sB, str(80 * 2048)), salu('s_lshl_b32', sT0, sP, '10'), salu('s_add_u32', sOUTB, sOUTB, sT0),
  salu('s_lshl_b32', sT0, sW, '8'), salu('s_add_u32', sOUTB, sOUTB, sT0), salu('s_lshl_b32', sT0, sHG, '5'), salu('s_add_u32', sOUTB, sOUTB, sT0),
  valu('v_min_u32', vPoll, '39', 'v0'), valu('v_lshlrev_b32', vPoll, '2', vPoll),
  salu('s_lshl_b32', sT0, sHG, '2'), salu('s_add_u32', sMYF, sFLG, sT0)]
gemm('O', wo_soff, wo_load, {1: split(gsetup, 2)}, 3, -1, publish)
stamp()
IB = 120; SUM = 200
mx = 'v14'
E(Wait('FL')); E(raw('FLAGCHECK'))
E(salu('s_mov_b32', sCNT, '0')); E(salu('s_mov_b32', sDONE, '0'))
E(raw("s_mov_b64 exec, 1"))
E(valu('v_mov_b32', f'v{T}', '1'))
for t in range(5):
    E(Wait(f'PS{t}'))
    E(bstore(f'v{T}', 'v10', sWS, sMYF, off=t * 32, tag='FS', flags=' sc1'))
E(raw("s_mov_b64 exec, -1"))
g.barrier_hist()
g.check_pending = False
g.label('L_poll')
E(raw(f"s_sleep {opt('psleep', 8)}"))
E(raw(f"buffer_load_dword {mx}, {vPoll}, {sWS}, {sFLG} offen sc1"))
E(raw("s_waitcnt vmcnt(0)"))
E(raw(f"v_cmp_ne_u32 vcc, 0, {mx}"))
E(raw("s_nop 4"))
E(raw(f"s_mov_b32 {sT3}, 0"))
for t in range(5):
    src = 'vcc_lo' if t < 4 else 'vcc_hi'
    E(raw(f"s_bfe_u32 {sT0}, {src}, {hex((8 << 16) | ((t % 4) * 8))}"))
    E(raw(f"s_cmp_eq_u32 {sT0}, 0xff")); E(raw(f"s_cselect_b32 {sT0}, {1 << t}, 0")); E(raw(f"s_or_b32 {sT3}, {sT3}, {sT0}"))
E(raw(f"s_add_u32 {sCNT}, {sCNT}, 1")); E(raw(f"s_cmp_gt_u32 {sCNT}, 0x40000")); E(raw(f"s_cselect_b32 {sT0}, 31, 0")); E(raw(f"s_or_b32 {sT3}, {sT3}, {sT0}"))
E(raw(f"s_andn2_b32 {sT3}, {sT3}, {sDONE}"))
E(raw("s_cbranch_scc0 L_poll"))
for t in range(5):
    E(raw(f"s_bitcmp1_b32 {sT3}, {t}")); E(raw(f"s_cbranch_scc0 L_gl{t}"))
    E(raw(f"s_add_u32 {sT1}, {sIN}, {t * 4096}"))
    for k in range(4): E(raw(f"buffer_load_dwordx4 {R('v', IB + t * 16 + k * 4, 4)}, {vL16}, {sWS}, {sT1} offen offset:{k * 1024} sc1"))
    g.label(f'L_gl{t}')
E(raw(f"s_cmp_eq_u32 {sT3}, 31")); E(raw("s_cbranch_scc1 L_gc")); E(raw("s_waitcnt vmcnt(0)")); g.label('L_gc')
for t in range(5):
    E(raw(f"s_bitcmp1_b32 {sT3}, {t}")); E(raw(f"s_cbranch_scc0 L_gs{t}"))
    E(raw(f"s_waitcnt vmcnt({16 - 4 * t})"))
    for k in range(4):
        for m in range(4):
            src = f'v{IB + t*16 + k*4 + m}'
            d = SUM + t * 8 + 2 * m
            if k == 0:
                E(valu('v_lshlrev_b32', f'v{d}', '16', src)); E(valu('v_and_b32', f'v{d+1}', sMASK, src))
            else:
                tm = T + (m % 4) * 2
                E(valu('v_lshlrev_b32', f'v{tm}', '16', src)); E(valu('v_and_b32', f'v{tm+1}', sMASK, src))
                E(valu('v_pk_add_f32', R('v', d, 2), R('v', d, 2), R('v', tm, 2)))
    E(raw(f"s_bitset1_b32 {sDONE}, {t}"))
    g.label(f'L_gs{t}')
E(raw(f"s_cmp_lg_u32 {sDONE}, 31")); E(raw("s_cbranch_scc1 L_poll"))
stamp()
for ta, tb in ((0, 1), (2, 3), (4, 5)):
    if tb == 5:
        for e in range(8): E(valu('v_mov_b32', f'v{SUM + tb*8 + e}', f'v{SUM + ta*8 + e}'))
    for e in range(8): E(valu('v_permlane32_swap_b32', f'v{SUM + ta*8 + e}', f'v{SUM + tb*8 + e}'))
    for e in range(0, 8, 2): E(valu('v_pk_add_f32', R('v', SUM + ta*8 + e, 2), R('v', SUM + ta*8 + e, 2), R('v', SUM + tb*8 + e, 2)))
    for m in range(4): E(valu('v_cvt_pk_bf16_f32', f'v{SUM + tb*8 + m}', f'v{SUM + ta*8 + 2*m}', f'v{SUM + ta*8 + 2*m + 1}'))
    E(salu('s_add_u32', sT1, sOUTB, str(ta * 32768)))
    if ta == 4: E(raw("s_mov_b64 exec, 0xffffffff"))
    E(bstore(R('v', SUM + tb * 8, 4), vOut, sOUT, sT1, tag='OUT'))
E(raw("s_mov_b64 exec, -1"))
if STAMP:
    E(raw("s_waitcnt vmcnt(0)"))
    stamp()
    E(raw(f"s_cmp_lg_u32 {sW}, 0")); E(raw("s_cbranch_scc1 L_end"))
    E(raw("s_mov_b64 exec, 1"))
    E(raw("s_lshl_b32 s96, s2, 7")); E(raw("v_mov_b32 v1, s96"))
    for k in range(stamp_n[0]):
        E(raw(f"v_mov_b32 v2, s{64+2*k}")); E(raw(f"v_mov_b32 v3, s{65+2*k}"))
        E(raw(f"buffer_store_dwordx2 v[2:3], v1, s[24:27], 0 offen offset:{k*8}")); E(raw("s_nop 1"))
    if not STEPS: E(raw(f"v_mov_b32 v2, {sCNT}")); E(raw(f"buffer_store_dwordx2 v[2:3], v1, s[24:27], 0 offen offset:120"))
g.label('L_end')
E(raw('s_endpgm'))
slow = ['L_flagslow:', raw("s_sleep 4"), raw(f"buffer_load_ubyte v14, v10, {sDBG}, {sFL} offen sc1"), raw("s_waitcnt vmcnt(0)"),
 raw(f"s_add_u32 {sCNT}, {sCNT}, 1"), raw(f"s_cmp_lt_u32 {sCNT}, 0x40000"), raw("s_cbranch_scc1 L_flagchk"), raw("s_branch L_flagok")]
new = []
for x in g.out:
    if not isinstance(x, str) and x.text == 'FLAGCHECK':
        new += [raw(f"s_mov_b32 {sCNT}, 0"), 'L_flagchk:', raw(f"v_readfirstlane_b32 {sT2}, v14"), raw("s_nop 3"),
                raw(f"s_cmp_eq_u32 {sT2}, 0"), raw("s_cbranch_scc1 L_flagslow"), 'L_flagok:']
    else: new.append(x)
g.out = new + slow + OOL
nbytes = align8(g)
print("stamps", stamp_n[0], "nops", g.nnop, "instrs", len(g.out), file=sys.stderr)
assert nbytes < 32768 + 128 * 128

K1 = NAME + "_kernel"
txt = f"""; generated by gen5.py
; @launch grid=(256,1,1) block=(256,1,1) lds=163840
.amdgcn_target "amdgcn-amd-amdhsa--gfx950"
.text
.globl {K1}
.p2align 8
.type {K1},@function
{K1}:
{g.text()}
.fill {(49152 + 256 - nbytes) // 4 + 64}, 4, 0xBF800000
.section .rodata,"a"
.p2align 6
.amdhsa_kernel {K1}
  .amdhsa_next_free_vgpr {256+236}
  .amdhsa_next_free_sgpr 102
  .amdhsa_accum_offset 256
  .amdhsa_group_segment_fixed_size 0
  .amdhsa_kernarg_size 104
  .amdhsa_user_sgpr_count 2
  .amdhsa_user_sgpr_kernarg_segment_ptr 1
  .amdhsa_system_sgpr_workgroup_id_x 1
.end_amdhsa_kernel
"""
open(out_path, 'w').write(txt)
```

```python
import sys, math, struct
from fw import *

NAME = "concat_heads__gqa_block_cached__gqa_block_cached__near_ridge"
STAMP = '--stamp' in sys.argv
def opt(name, default):
    for a in sys.argv:
        if a.startswith(f'--{name}='): return int(a.split('=')[1])
    return default
ROTMASK = opt('rotmask', 15)
NCLS = opt('ncls', 8)
KSP = opt('ksp', 1)
K0 = opt('k0', -1)
CLRD = opt('clrd', 2)
KREAD = opt('kread', 9)
V0 = 99; VSP = 0
VQ13 = opt('vq13', 2)
WB = opt('wb', 2)
PFCODE = opt('pfcode', 1); NOCLR = 1
NT = ' nt' if opt('nt', 1) else ''
STEPS = 'Q' if '--stepsQ' in sys.argv else ('O' if '--stepsO' in sys.argv else None)
out_path = sys.argv[1]

g = Gen()
E = g.emit
sX, sK, sV, sWQ, sWO, sWS, sOUT, sDBG = 's[4:7]', 's[8:11]', 's[12:15]', 's[16:19]', 's[20:23]', 's[24:27]', 's[28:31]', 's[32:35]'
sP, sB, sHG, sW, sH, sROT = 's36', 's37', 's38', 's39', 's40', 's41'
sSEL = ['s42', 's43']; sC = 's44'
sKV = 's45'; sXB = 's46'
sT0, sT1, sT2, sT3 = 's47', 's48', 's49', 's50'
sWoff = 's51'; sWbase = 's52'; sVL = 's53'; sXM = 's54'
sGRP = 's55'; sIN = 's56'; sMASK = 's57'; sCNT = 's58'; sOUTB = 's59'; sPUB = 's60'; sCLS = 's61'; sCD = 's62'; sDONE = 's63'; sFL = 's3'; sFLG = 's100'
vL16, vBF, vBFr, vBc, vXs, vVs0, vVtr = 'v1', 'v2', 'v3', 'v4', 'v5', 'v6', 'v7'
vW = [f'v{8+j}' for j in range(8)]
RING, RN = 16, 3
PB = 112; ACC = 120; TMP = 248
vCol, vG = f'v{TMP+7}', f'v{TMP+6}'
vKs = [f'v{TMP+k}' for k in range(4)]
vVs1 = f'v{TMP+4}'; vKr = f'v{TMP+5}'
def acc(i, t): return R('v', ACC + (t * 8 + i) * 4, 4) if t < 4 else R('a', i * 4, 4)
def accr(i, t, r): return f'v{ACC + (t*8+i)*4 + r}' if t < 4 else f'a{i*4+r}'
XF, KF, VF, AONE = 32, 72, 152, 232
XLDS, VLDS = 0, 81920
INBOX = 1 << 20; FLAGS = 1 << 19
T = PB

stamp_n = [0]
def sstamp(ph):
    if STEPS != ph: return
    k = stamp_n[0]; stamp_n[0] += 1
    E(raw(f"s_memtime s[{64+2*k}:{65+2*k}]"))
def stamp():
    if not STAMP or STEPS: return
    k = stamp_n[0]; stamp_n[0] += 1
    E(raw("s_memrealtime s[96:97]")); E(raw("s_memtime s[98:99]")); E(raw("s_waitcnt lgkmcnt(0)"))
    g.lg_done = len(g.lg)
    E(raw(f"s_mov_b32 s{64+2*k}, s96")); E(raw(f"s_mov_b32 s{65+2*k}, s98"))
def flat(L):
    o = []
    for x in L:
        if isinstance(x, (list, tuple)): o += flat(x)
        else: o.append(x)
    return o
def flat1(L): return [y for x in L for y in x]
def split(L, n=3): return [L[k:k+n] for k in range(0, len(L), n)]
def weave(a, b):
    out = []; nb = len(b); na = len(a); j = 0
    for k, x in enumerate(a):
        while j < nb and j * na <= k * nb:
            out.append(b[j]); j += 1
        out.append(x)
    out += b[j:]
    return out

E(raw("s_cmp_ge_u32 s2, 256")); E(raw("s_cbranch_scc1 L_end"))
if STAMP: E(raw("s_memrealtime s[96:97]")); E(raw("s_memtime s[98:99]"))
E(raw("s_load_dwordx16 s[64:79], s[0:1], 0"))
E(raw("s_load_dwordx8 s[80:87], s[0:1], 64"))
E(raw("s_load_dwordx2 s[88:89], s[0:1], 96"))
if PFCODE:
    E(raw("s_getpc_b64 s[90:91]", wr=['s90', 's91']))
    E(valu('v_lshlrev_b32', 'v8', '7', 'v0'))
    E(valu('v_mov_b32', 'v9', 's91'))
    E(raw("v_add_co_u32 v8, vcc, s90, v8", cls='valu', rd=['s90', 'v8'], wr=['v8', 'vcc']))
    E(raw("v_addc_co_u32 v9, vcc, 0, v9, vcc", cls='valu', rd=['v9', 'vcc'], wr=['v9', 'vcc']))
    E(I("global_load_dword v112, v[8:9], off", 'vmem', ['v8', 'v9'], ['v112'], tag='PF', cnt='vm'))
    E(raw("v_add_co_u32 v8, vcc, 0x8000, v8", cls='valu', rd=['v8'], wr=['v8', 'vcc']))
    E(raw("v_addc_co_u32 v9, vcc, 0, v9, vcc", cls='valu', rd=['v9', 'vcc'], wr=['v9', 'vcc']))
    E(raw("v_cmp_gt_u32 vcc, 128, v0", cls='valu', rd=['v0'], wr=['vcc']))
    E(raw("s_nop 1")); E(raw("s_and_saveexec_b64 s[92:93], vcc")); E(raw("s_cbranch_execz L_pf"))
    E(raw("global_load_dword v113, v[8:9], off"))
    g.label('L_pf')
    E(raw("s_mov_b64 exec, s[92:93]"))
E(salu('s_and_b32', sP, 's2', '1'))
E(salu('s_lshr_b32', sT0, 's2', '1')); E(salu('s_and_b32', sT0, sT0, '3'))
E(salu('s_lshr_b32', sT1, 's2', '3'))
E(salu('s_and_b32', sT2, sT1, '1'))
E(salu('s_lshl_b32', sHG, sT0, '1')); E(salu('s_add_u32', sHG, sHG, sT2))
E(salu('s_lshr_b32', sB, sT1, '1'))
E(valu('v_lshrrev_b32', 'v8', '6', 'v0'))
E(valu('v_and_b32', 'v0', '63', 'v0'))
E(valu('v_readfirstlane_b32', sW, 'v8'))
E(valu('v_lshrrev_b32', vG, '4', 'v0'))
E(valu('v_and_b32', 'v10', '15', 'v0'))
E(valu('v_lshlrev_b32', vL16, '4', 'v0'))
E(valu('v_xor_b32', 'v11', 'v10', vG))
E(valu('v_lshlrev_b32', 'v11', '4', 'v11'))
E(valu('v_lshl_add_u32', vBF, 'v10', '8', 'v11'))
E(salu('s_and_b32', sROT, sB, str(ROTMASK)))
E(salu('s_and_b32', sT0, sROT, '3')); E(salu('s_lshl_b32', sT0, sT0, '6'))
E(valu('v_xor_b32', vBFr, sT0, vBF))
E(valu('v_lshl_add_u32', vXs, vG, '10', 'v11'))
E(salu('s_mul_i32', sT0, sW, str(4096 + 64)))
E(valu('v_xor_b32', vXs, sT0, vXs))
E(valu('v_lshlrev_b32', vCol, '4', 'v10'))
E(salu('s_lshl_b32', sH, sHG, '2')); E(salu('s_add_u32', sH, sH, sW))
E(salu('s_mul_i32', sXB, sB, '81920'))
E(salu('s_lshr_b32', sT0, sROT, '2')); E(salu('s_lshl_b32', sT0, sT0, '8')); E(salu('s_add_u32', sXB, sXB, sT0))
E(salu('s_lshl_b32', sXM, sW, '10'))
E(salu('s_lshl_b32', sWbase, sH, '8')); E(salu('s_lshl_b32', sT0, sROT, '18')); E(salu('s_add_u32', sWbase, sWbase, sT0))
late = []
A = late.append
t12, t13, c_ = 'v114', 'v115', 'v116'
A(valu('v_and_b32', c_, '15', 'v0'))
A(valu('v_lshlrev_b32', t12, '2', vG)); A(valu('v_xor_b32', t12, t12, c_)); A(valu('v_lshlrev_b32', t12, '4', t12))
A(valu('v_lshl_add_u32', vKs[0], vG, '8', t12))
for v in range(1, 4): A(valu('v_xor_b32', vKs[v], str(v * 16), vKs[0]))
A(valu('v_and_b32', t12, '3', c_)); A(valu('v_xor_b32', t12, t12, vG)); A(valu('v_lshrrev_b32', t13, '2', c_))
A(valu('v_lshl_add_u32', t12, t12, '2', t13)); A(valu('v_lshlrev_b32', t12, '4', t12)); A(valu('v_lshl_add_u32', vKr, c_, '8', t12))
A(valu('v_lshrrev_b32', t12, '1', c_)); A(valu('v_xor_b32', t12, t12, vG)); A(valu('v_lshlrev_b32', t12, '5', t12))
A(valu('v_and_b32', t13, '1', c_)); A(valu('v_lshl_add_u32', t12, t13, '4', t12)); A(valu('v_lshl_add_u32', vVs0, vG, '8', t12))
A(valu('v_xor_b32', vVs1, '128', vVs0))
A(valu('v_lshrrev_b32', t12, '2', 'v0')); A(valu('v_and_b32', t13, '7', t12)); A(valu('v_lshlrev_b32', t13, '5', t13))
A(valu('v_lshl_add_u32', t13, t12, '8', t13)); A(valu('v_and_b32', t12, '3', 'v0')); A(valu('v_lshl_add_u32', vVtr, t12, '3', t13))
A(salu('s_mov_b32', sSEL[0], '0x05040100')); A(salu('s_mov_b32', sSEL[1], '0x07060302'))
cval = (128 ** -0.5) * math.log2(math.e)
A(salu('s_mov_b32', sC, hex(struct.unpack('<I', struct.pack('<f', cval))[0])))
A(salu('s_lshl_b32', sKV, sB, '5')); A(salu('s_add_u32', sKV, sKV, sH)); A(salu('s_mul_i32', sKV, sKV, '20480'))
A(salu('s_mul_i32', sVL, sW, '20480')); A(salu('s_add_u32', sVL, sVL, str(VLDS)))
A(valu('v_add_u32', vVtr, sVL, vVtr)); A(valu('v_add_u32', vKr, sVL, vKr))
A(salu('s_lshl_b32', sGRP, sP, '4')); A(salu('s_add_u32', sGRP, sGRP, sB))
A(salu('s_and_b32', sCLS, sB, str(NCLS - 1))); A(salu('s_mov_b32', sCD, '0'))
A(salu('s_lshl_b32', sIN, sGRP, '3')); A(salu('s_add_u32', sIN, sIN, sHG)); A(salu('s_lshl_b32', sIN, sIN, '2')); A(salu('s_add_u32', sIN, sIN, sW))
A(salu('s_mul_i32', sIN, sIN, '20480')); A(salu('s_add_u32', sIN, sIN, str(INBOX)))
A(salu('s_lshl_b32', sFL, sGRP, '2')); A(salu('s_add_u32', sFL, sFL, sW))
A(salu('s_lshl_b32', sFLG, sFL, '8')); A(salu('s_add_u32', sFLG, sFLG, str(FLAGS)))
A(valu('v_mov_b32', t12, '0')); A(valu('v_lshlrev_b32', t13, '2', 'v0'))
A(raw(f"s_cmp_lg_u32 {sHG}, 0")); A(raw("s_cbranch_scc1 L_nc"))
A(raw(f"buffer_store_dword {t12}, {t13}, {sWS}, {sFLG} offen sc1"))
A(Label('L_nc'))
E(valu('v_lshl_add_u32', vW[0], vG, '16', vCol))
for j in range(1, 8): E(valu('v_add_u32', vW[j], str(8192 * j), vW[0]))
E(raw("s_waitcnt lgkmcnt(0)"))
E(raw(f"s_cmp_eq_u32 {sP}, 0"))
def srd(base, pa, pb, size):
    E(raw(f"s_cselect_b32 s{base}, s{pa}, s{pb}")); E(raw(f"s_cselect_b32 s{base+1}, s{pa+1}, s{pb+1}"))
    E(raw(f"s_mov_b32 s{base+2}, {size}")); E(raw(f"s_mov_b32 s{base+3}, 0x00020000"))
srd(4, 64, 74, 1310720); srd(16, 70, 80, 4194304)

def xdma(n):
    L = [salu('s_xor_b32', sT0, sXB, str(n * 256))]
    for t in range(5):
        L.append(salu('s_add_u32', 'm0', sXM, str(XLDS + n * 20480 + t * 4096)))
        L.append(salu('s_add_u32', sT2, sT0, str(t * 16384)))
        L.append(bload_lds(vXs, sX, sT2, tag=f'X{n}'))
    return L
def wq_soff(i): return [salu('s_xor_b32', sWoff, sWbase, str(i << 18))]
def wq_load(i, j): return bload(R('v', RING + (i % RN) * 32 + j * 4, 4), vW[j], sWQ, sWoff, tag=f'Q{i}')
def wo_soff(i): return [salu('s_xor_b32', sWoff, sWbase, str(i << 15))]
def wo_load(i, j): return bload(R('v', RING + (i % RN) * 32 + j * 4, 4), vW[j >> 2], sWO, sWoff, off=(j & 3) * 1024, tag=f'O{i}')
def kvquad(kind, u):
    srd_ = sK if kind == 'K' else sV
    L = [salu('s_add_u32', sT3, sKV, str(u * 4096)), salu('s_add_u32', 'm0', sVL, str(u * 4096))]
    for v in range(4):
        va = vKs[v] if kind == 'K' else (vVs1 if v & 1 else vVs0)
        L.append(bload_lds(va, srd_, sT3, off=v * 1024, flags=NT))
    return L
def clear():
    L = []
    for t in range(5):
        L.append(salu('s_add_u32', sT1, sIN, str(t * 4096)))
        for k in range(4): L.append(bstore(R('a', AONE, 4), vL16, sWS, sT1, off=k * 1024, flags=' sc1'))
    return L
OOL = []
def site(kind, cls, cd=2):
    if cls < 0 or cls >= NCLS: return []
    name = f'{kind}{cls}'
    h = Gen(); h.check_pending = False
    h.label(f'L_o{name}')
    h.emit(clear() if kind == 'C' else flat([kvquad(kind, u) for u in range(5)]))
    h.emit(raw(f's_mov_b32 {sCD}, {cd}')); h.emit(raw(f's_branch L_r{name}'))
    OOL.extend(h.out)
    return [raw(f's_cmp_eq_u32 {sCLS}, {cls}'), raw(f's_cbranch_scc1 L_o{name}'), Label(f'L_r{name}')]
def sites_at(i, cd=2):
    L = []
    for c in range(NCLS):
        if K0 + c * KSP == i: L += site('K', c, cd)
        if K0 + c * KSP + CLRD == i and not NOCLR: L += site('C', c, cd)
        if V0 + c * VSP == i: L += site('V', c, cd)
    return L
def kreads():
    L = []
    for r in range(4):
        grp = [valu('v_xor_b32', vKs[r], str(r * 16), vKr)]
        for u in range(5):
            grp.append(dsread(R('a', KF + (u * 4 + r) * 4, 4), vKs[r], u * 4096, tag='KF'))
            L.append(grp); grp = []
    return L
def baddr(i): return valu('v_xor_b32', vBc, str(XLDS + (i & 3) * 64 + (i >> 2) * 20480), vBFr)
def bfrag(i, t): return R('a', XF + (i % 2) * 20 + t * 4, 4)
def bfrag_read(ph, i, t): return dsread(bfrag(i, t), vBc, t * 4096, tag=f'{ph}B{i}')
def perm(i, tile, q, dst=None):
    lo = RING + (i % RN) * 32 + (2 * q) * 4 + (tile >> 1)
    d = PB + (tile % 2) * 4 + q if dst is None else dst + tile * 4 + q
    return valu('v_perm_b32', f'v{d}', f'v{lo+4}', f'v{lo}', sSEL[tile % 2])

def gemm(ph, soff_f, load_f, extra, pre_issued, barrier_at, tail_fill, sites=None, ex13=(), ex14=(), ex15=()):
    cd = (sCD, 20) if sites else None
    def WW(i): return Wait(f'{ph}{i}', cd=cd)
    E(WW(0))
    for q in range(4): E(perm(0, 0, q))
    F14 = RING + (13 % RN) * 32
    ng = 8 // WB
    for i in range(14):
        sstamp(ph)
        ex = list(extra.get(i, []))
        for tile in range(8):
            fill = [[] for _ in range(5)]
            ni, nt = (i, tile + 1) if tile < 7 else (i + 1, 0)
            if ni < 14:
                if nt == 0: fill[0].append(WW(ni))
                fill[0] += [perm(ni, nt, 0), perm(ni, nt, 1)]
                fill[1] += [perm(ni, nt, 2), perm(ni, nt, 3)]
            li, gi = (i + RN, 0) if tile == 7 else (i - 1 + RN, tile + 1)
            if pre_issued <= li < 16 and gi < ng:
                if gi == 0: fill[2] += soff_f(li)
                for k in range(WB): fill[2 + (k * 2) // WB].append(load_f(li, gi * WB + k))
            if tile < 5:
                if tile == 0:
                    if barrier_at == i: fill[4].append(raw('s_barrier'))
                    fill[4].append(baddr(i + 1))
                fill[4].append(bfrag_read(ph, i + 1, tile))
            if sites and tile == ng - 1:
                st = sites(i)
                fill[2] += st
            if i == 13 and tile == ng - 1: ex += list(ex13)
            if ex:
                k = (len(ex) + (7 - tile)) // (8 - tile)
                for kk in range(k): fill[2 if kk < (k + 1) // 2 else 3] += ex.pop(0)
            if i == 13 and tile == 7:
                fill[0] += [WW(14)] + [perm(14, 0, q, F14) for q in range(2)]
                fill[1] += [perm(14, 0, q, F14) for q in range(2, 4)]
                fill[2] += [perm(14, 1, q, F14) for q in range(2)]
                fill[3] += [perm(14, 1, q, F14) for q in range(2, 4)]
                fill[4] += [perm(14, 2, q, F14) for q in range(2)]
            if tile == 0: E(Wait(f'{ph}B{i}'))
            for t in range(5):
                a_ = acc(tile, t)
                E(mfma(a_, R('v', PB + (tile % 2) * 4, 4), bfrag(i, t), '0' if i == 0 else a_))
                E(fill[t])
    F15 = RING + (14 % RN) * 32
    p14 = [perm(14, 2, q, F14) for q in range(2, 4)] + [perm(14, tl, q, F14) for tl in range(3, 8) for q in range(4)]
    p15 = [WW(15)] + [perm(15, tl, q, F15) for tl in range(8) for q in range(4)]
    b15 = [baddr(15)] + [bfrag_read(ph, 15, t) for t in range(5)]
    sstamp(ph)
    E(Wait(f'{ph}B14'))
    def M(i, tile, t):
        F = F14 if i == 14 else F15
        return mfma(acc(tile, t), R('v', F + tile * 4, 4), bfrag(i, t), acc(tile, t))
    seq1 = [M(14, tl, t) for tl in range(8) for t in range(3)]
    fill1 = b15[:3] + p14[:2] + b15[3:] + p14[2:] + list(ex14) + p15
    E(interleave(seq1, fill1[:48], per=2))
    rest = fill1[48:]
    E(Wait(f'{ph}B15'))
    E(interleave([M(14, tl, 3) for tl in range(8)], rest, per=2))
    order = [('a', 0), ('a', 1), ('b', 4), ('a', 2), ('a', 3), ('a', 4)]
    pend = list(ex15)
    for kind, t in order:
        seq = [M(15 if kind == 'a' else 14, tl, t) for tl in range(8)]
        E(interleave(seq, pend[:14], per=2, start=1)); pend = pend[14:]
        if kind == 'a': pend = pend + tail_fill(t)
    E(pend)
    sstamp(ph)

E(xdma(0))
E(wq_soff(0))
for j in range(8): E(wq_load(0, j))
E(wq_soff(1))
for j in range(8): E(wq_load(1, j))
E(raw(f"s_cmp_eq_u32 {sP}, 0"))
srd(8, 66, 76, 10485760); srd(12, 68, 78, 10485760); srd(20, 72, 82, 4194304)
srd(24, 88, 88, 268435456); srd(28, 84, 84, 2621440); srd(32, 86, 86, 256)
if STAMP and not STEPS:
    E(raw("s_mov_b32 s64, s96")); E(raw("s_mov_b32 s65, s98")); stamp_n[0] = 1
E(late)
E(baddr(0))
E(Wait('X0')); E(raw('s_barrier'))
for t in range(5): E(bfrag_read('Q', 0, t))
E(wq_soff(2))
for j in range(8): E(wq_load(2, j))
E(sites_at(-1, cd=3))
stamp()
extra = {i: [] for i in range(14)}
for n in (1, 2, 3):
    x = xdma(n); extra[0] += [x[:4]] + split(x[4:])
extra[KREAD] += kreads()
assert K0 + (NCLS - 1) * KSP + 3 <= KREAD and KREAD < 13
def vq(u):
    L = kvquad('V', u)
    for x in L:
        if x.cls == 'vmem': x.tag = 'V'
    return [L[:3]] + [[x] for x in L[3:]]
v13 = [[Wait('KF')]] + flat1([vq(u) for u in range(VQ13)])
vrest = [vq(u) for u in range(VQ13, 5)]

QF = [RING + 0, RING + 16, 120, 136, 152]
def cvt_unit(dst, t, r):
    L = []
    for m in range(4):
        if t < 4:
            L.append(valu('v_cvt_pk_bf16_f32', f'v{dst + m}', accr(2*m, t, r), accr(2*m+1, t, r)))
        else:
            t0, t1 = f'v{T + (m % 2) * 2}', f'v{T + (m % 2) * 2 + 1}'
            L.append(valu('v_accvgpr_read_b32', t0, accr(2*m, t, r)))
            L.append(valu('v_accvgpr_read_b32', t1, accr(2*m+1, t, r)))
            L.append(valu('v_cvt_pk_bf16_f32', f'v{dst + m}', t0, t1))
    return L
def cq(t): return flat([cvt_unit(QF[t] + r * 4, t, r) for r in range(4)])
gemm('Q', wq_soff, wq_load, extra, 3, 3, cq, sites=sites_at, ex13=v13, ex14=(vrest.pop(0) if vrest else []), ex15=(vrest.pop(0) if vrest else []))
stamp()
E(raw('s_barrier'))
E(valu('v_mov_b32', 'v10', '0')); E(valu('v_mov_b32', 'v11', '1'))
E(raw(f"s_cmp_lg_u32 {sHG}, 0")); E(raw("s_cbranch_scc1 L_nf"))
E(raw("s_mov_b64 exec, 1")); E(raw(f"buffer_store_byte v11, v10, {sDBG}, {sFL} offen sc1")); E(raw("s_mov_b64 exec, -1"))
g.label('L_nf')

wo_pre = [valu('v_lshl_add_u32', vW[0], vG, '12', vCol), valu('v_add_u32', vW[1], '16384', vW[0]),
          salu('s_lshl_b32', sWbase, sHG, '19'), salu('s_lshl_b32', sT0, sW, '8'), salu('s_add_u32', sWbase, sWbase, sT0),
          salu('s_lshl_b32', sT0, sROT, '15'), salu('s_add_u32', sWbase, sWbase, sT0)]
def wo_batch(i): return wo_soff(i) + [wo_load(i, j) for j in range(8)]

SB = [168, 188]
PF = [208, 218, 228, 238, 120]
def qk(t):
    L = []
    for r in range(4):
        for u in range(5):
            d = R('v', SB[t % 2] + u * 4, 4)
            L.append(mfma(d, R('a', KF + (u * 4 + r) * 4, 4), R('v', QF[t] + r * 4, 4), '0' if r == 0 else d))
    return L
def softmax(t):
    s = [f'v{SB[t % 2] + k}' for k in range(20)]
    tb = T + (t % 2) * 4
    m, t1, sm, sm2 = f'v{tb}', f'v{tb+1}', f'v{tb+2}', f'v{tb+3}'
    L = [valu('v_max3_f32', m, s[0], s[1], s[2]), valu('v_max3_f32', t1, s[3], s[4], s[5])]
    for k in range(6, 18, 4):
        L.append(valu('v_max3_f32', m, m, s[k], s[k+1])); L.append(valu('v_max3_f32', t1, t1, s[k+2], s[k+3]))
    L.append(valu('v_max3_f32', m, m, s[18], s[19]))
    L.append(valu('v_max_f32', m, m, t1))
    for op in ('v_permlane32_swap_b32', 'v_permlane16_swap_b32'):
        L.append(valu('v_mov_b32', t1, m)); L.append(valu(op, m, t1)); L.append(valu('v_max_f32', m, m, t1))
    L.append(valu('v_mul_f32', m, sC, m))
    for k in range(20): L.append(valu('v_fma_f32', s[k], s[k], sC, '-' + m))
    for k in range(20): L.append(valu('v_exp_f32', s[k], s[k]))
    L.append(valu('v_add_f32', sm, s[0], s[1])); L.append(valu('v_add_f32', sm2, s[2], s[3]))
    for k in range(4, 20, 2):
        L.append(valu('v_add_f32', sm, sm, s[k])); L.append(valu('v_add_f32', sm2, sm2, s[k+1]))
    L.append(valu('v_add_f32', sm, sm, sm2))
    for op in ('v_permlane32_swap_b32', 'v_permlane16_swap_b32'):
        L.append(valu('v_mov_b32', sm2, sm)); L.append(valu(op, sm, sm2)); L.append(valu('v_add_f32', sm, sm, sm2))
    L.append(valu('v_rcp_f32', sm, sm))
    for k in range(20): L.append(valu('v_mul_f32', s[k], s[k], sm))
    for k in range(10): L.append(valu('v_cvt_pk_bf16_f32', f'v{PF[t] + k}', s[2*k], s[2*k+1]))
    return L

VT = opt('vt', 3000); WT = [opt('wt1', 800), opt('wt2', 1800), opt('wt0', 2800)]
early = {}
def at(L, t0, dt=0):
    for k, x in enumerate(L): early[id(x)] = t0 + k * dt
    return L
vr = flat(vrest)
for x in vr:
    if x.cls == 'vmem': x.wr.add('Vq')
wV = Wait('V'); wV.rd = {'Vq'}; wV.wr = {'Vready'}; early[id(wV)] = VT
vTa = ['v13', 'v15']
def vreads():
    L = []
    for i in range(8):
        L.append(valu('v_xor_b32', vTa[i % 2], str(i * 32), vVtr))
        for u in range(5):
            d = dsread(R('a', VF + i * 10 + u * 2, 2), vTa[i % 2], u * 4096, tag='VF', op='ds_read_b64_tr_b16'); d.rd.add('Vready')
            L.append(d)
    return L
vOw = [f'v{TMP+y}' for y in range(4)]
osetup = [salu('s_lshr_b32', sT0, sROT, '2'), salu('s_xor_b32', sT0, sT0, sW), salu('s_mul_i32', sT0, sT0, '20480'), valu('v_add_u32', vOw[0], sT0, vBF)]
osetup += [valu('v_xor_b32', vOw[y], str(y * 64), vOw[0]) for y in range(1, 4)]
OB = [130, 146]
def pvh(t, hf):
    ob = OB[hf]
    L = []
    for z in range(3):
        for q in range(4):
            i = 4 * hf + q
            d = R('v', ob + q * 4, 4)
            if z < 2: L.append(mfma(d, R('a', VF + i * 10 + z * 4, 4), R('v', PF[t] + z * 4, 4), '0' if z == 0 else d))
            else: L.append(mfma(d, R('a', VF + i * 10 + 8, 2), R('v', PF[t] + 8, 2), d, shape='16x16x16'))
    for yy in range(2):
        b0 = ob + yy * 8
        for k in range(4): L.append(valu('v_cvt_pk_bf16_f32', f'v{b0+k}', f'v{b0+2*k}', f'v{b0+2*k+1}'))
        L.append(dswrite(vOw[2 * hf + yy], R('v', b0, 4), XLDS + t * 4096, tag='OW'))
    return L
vPub = 'v12'
pubsetup = [salu('s_mov_b32', sT2, '163840'), valu('v_mul_lo_u32', 'v14', vG, sT2), valu('v_add_u32', vPub, vCol, 'v14'),
            salu('s_mul_i32', sPUB, sGRP, '655360'), salu('s_mul_i32', sT2, sW, '20480'), salu('s_add_u32', sPUB, sPUB, sT2),
            salu('s_lshl_b32', sT2, sHG, '9'), salu('s_add_u32', sPUB, sPUB, sT2), salu('s_add_u32', sPUB, sPUB, str(INBOX))]
vOut, vPoll = f'v{TMP+5}', 'v5'; sMYF = 's101'
gsetup = [salu('s_mov_b32', sMASK, '0xffff0000'),
  valu('v_lshlrev_b32', vOut, '7', vCol), valu('v_and_b32', 'v14', '1', vG), valu('v_lshl_add_u32', vOut, 'v14', '4', vOut),
  valu('v_lshrrev_b32', 'v14', '1', vG), valu('v_lshl_add_u32', vOut, 'v14', '15', vOut),
  salu('s_mul_i32', sOUTB, sB, str(80 * 2048)), salu('s_lshl_b32', sT0, sP, '10'), salu('s_add_u32', sOUTB, sOUTB, sT0),
  salu('s_lshl_b32', sT0, sW, '8'), salu('s_add_u32', sOUTB, sOUTB, sT0), salu('s_lshl_b32', sT0, sHG, '5'), salu('s_add_u32', sOUTB, sOUTB, sT0),
  valu('v_min_u32', vPoll, '39', 'v0'), valu('v_lshlrev_b32', vPoll, '2', vPoll),
  salu('s_lshl_b32', sT0, sHG, '2'), salu('s_add_u32', sMYF, sFLG, sT0)]
warm = []
if opt('tlb', 1):
    wa = salu('s_add_u32', sT1, sPUB, '81920')
    warm = [bload('a232', vPub, sWS, sPUB, tag='TW'), wa, bload('a233', vPub, sWS, sT1, tag='TW'), bload('a234', vOut, sOUT, sOUTB, tag='TW'), bload('a235', 'v10', sWS, sFLG, off=252, tag='TW')]
flagld = I(f'buffer_load_ubyte v14, v10, {sDBG}, {sFL} offen sc1', 'vmem', ['v10'], ['v14'], tag='FL', cnt='vm')
att = at(vr, 0, 40) + wo_pre + osetup + pubsetup + gsetup + at(warm, opt('tw', 1500), 40) + qk(0) + qk(1) + softmax(0) + at(wo_batch(1), WT[0], 40) + qk(2) + softmax(1) + at(wo_batch(2), WT[1], 40) \
    + qk(3) + softmax(2) + at(wo_batch(0), WT[2], 40) + qk(4) + [wV] + vreads() + softmax(3) + softmax(4) + at([flagld], VT + 1000)
for t in range(5): att += pvh(t, 0) + pvh(t, 1)
if opt('pure', 0):
    mem = [x for x in att if not isinstance(x, Wait) and (x.cls == 'vmem' or (x.cls == 'salu' and id(x) in early))]
    att = [x for x in att if x not in mem]
    E([x for x in mem if x in vr]); E(Wait('V')); stamp_n[0] -= 1; stamp()
    att += at([x for x in mem if x not in vr], 99999)
g.autowait = True
E(schedule(att, earliest=lambda x: early.get(id(x)), verbose='att'))
g.autowait = False
stamp()
E(baddr(0))
E(Wait('OW')); E(raw('s_barrier'))
for t in range(5): E(bfrag_read('O', 0, t))
stamp()
PUBR = RING + 0
pk = [0]
def publish(t):
    L = []
    for r in range(4):
        d = PUBR + (pk[0] % 8) * 4; pk[0] += 1
        L += cvt_unit(d, t, r)
        L.append(salu('s_add_u32', sT1, sPUB, str((r >> 1) * 81920 + (r & 1) * 256 + t * 4096)))
        L.append(bstore(R('v', d, 4), vPub, sWS, sT1, tag=f'PS{t}', flags=' sc1'))
    return L
gemm('O', wo_soff, wo_load, {}, 3, -1, publish)
stamp()
IB = 120; SUM = 200
mx = 'v14'
E(Wait('FL')); E(raw('FLAGCHECK'))
E(salu('s_mov_b32', sCNT, '0')); E(salu('s_mov_b32', sDONE, '0'))
E(raw("s_mov_b64 exec, 1"))
E(valu('v_mov_b32', f'v{T}', '1'))
for t in range(5):
    E(Wait(f'PS{t}'))
    E(bstore(f'v{T}', 'v10', sWS, sMYF, off=t * 32, tag='FS', flags=' sc1'))
E(raw("s_mov_b64 exec, -1"))
g.barrier_hist()
g.check_pending = False
g.label('L_poll')
E(raw(f"s_sleep {opt('psleep', 8)}"))
E(raw(f"buffer_load_dword {mx}, {vPoll}, {sWS}, {sFLG} offen sc1"))
E(raw("s_waitcnt vmcnt(0)"))
E(raw(f"v_cmp_ne_u32 vcc, 0, {mx}"))
E(raw("s_nop 4"))
E(raw(f"s_mov_b32 {sT3}, 0"))
for t in range(5):
    src = 'vcc_lo' if t < 4 else 'vcc_hi'
    E(raw(f"s_bfe_u32 {sT0}, {src}, {hex((8 << 16) | ((t % 4) * 8))}"))
    E(raw(f"s_cmp_eq_u32 {sT0}, 0xff")); E(raw(f"s_cselect_b32 {sT0}, {1 << t}, 0")); E(raw(f"s_or_b32 {sT3}, {sT3}, {sT0}"))
E(raw(f"s_add_u32 {sCNT}, {sCNT}, 1")); E(raw(f"s_cmp_gt_u32 {sCNT}, 0x40000")); E(raw(f"s_cselect_b32 {sT0}, 31, 0")); E(raw(f"s_or_b32 {sT3}, {sT3}, {sT0}"))
E(raw(f"s_andn2_b32 {sT3}, {sT3}, {sDONE}"))
E(raw("s_cbranch_scc0 L_poll"))
for t in range(5):
    E(raw(f"s_bitcmp1_b32 {sT3}, {t}")); E(raw(f"s_cbranch_scc0 L_gl{t}"))
    E(raw(f"s_add_u32 {sT1}, {sIN}, {t * 4096}"))
    for k in range(4): E(raw(f"buffer_load_dwordx4 {R('v', IB + t * 16 + k * 4, 4)}, {vL16}, {sWS}, {sT1} offen offset:{k * 1024} sc1"))
    g.label(f'L_gl{t}')
E(raw(f"s_cmp_eq_u32 {sT3}, 31")); E(raw("s_cbranch_scc1 L_gc")); E(raw("s_waitcnt vmcnt(0)")); g.label('L_gc')
for t in range(5):
    E(raw(f"s_bitcmp1_b32 {sT3}, {t}")); E(raw(f"s_cbranch_scc0 L_gs{t}"))
    E(raw(f"s_waitcnt vmcnt({16 - 4 * t})"))
    for k in range(4):
        for m in range(4):
            src = f'v{IB + t*16 + k*4 + m}'
            d = SUM + t * 8 + 2 * m
            if k == 0:
                E(valu('v_lshlrev_b32', f'v{d}', '16', src)); E(valu('v_and_b32', f'v{d+1}', sMASK, src))
            else:
                tm = T + (m % 4) * 2
                E(valu('v_lshlrev_b32', f'v{tm}', '16', src)); E(valu('v_and_b32', f'v{tm+1}', sMASK, src))
                E(valu('v_pk_add_f32', R('v', d, 2), R('v', d, 2), R('v', tm, 2)))
    E(raw(f"s_bitset1_b32 {sDONE}, {t}"))
    g.label(f'L_gs{t}')
E(raw(f"s_cmp_lg_u32 {sDONE}, 31")); E(raw("s_cbranch_scc1 L_poll"))
stamp()
for ta, tb in ((0, 1), (2, 3), (4, 5)):
    if tb == 5:
        for e in range(8): E(valu('v_mov_b32', f'v{SUM + tb*8 + e}', f'v{SUM + ta*8 + e}'))
    for e in range(8): E(valu('v_permlane32_swap_b32', f'v{SUM + ta*8 + e}', f'v{SUM + tb*8 + e}'))
    for e in range(0, 8, 2): E(valu('v_pk_add_f32', R('v', SUM + ta*8 + e, 2), R('v', SUM + ta*8 + e, 2), R('v', SUM + tb*8 + e, 2)))
    for m in range(4): E(valu('v_cvt_pk_bf16_f32', f'v{SUM + tb*8 + m}', f'v{SUM + ta*8 + 2*m}', f'v{SUM + ta*8 + 2*m + 1}'))
    E(salu('s_add_u32', sT1, sOUTB, str(ta * 32768)))
    if ta == 4: E(raw("s_mov_b64 exec, 0xffffffff"))
    E(bstore(R('v', SUM + tb * 8, 4), vOut, sOUT, sT1, tag='OUT', flags=['', ' sc1', ' nt', ' sc0 sc1'][opt('outf', 0)]))
E(raw("s_mov_b64 exec, -1"))
if STAMP:
    E(raw("s_waitcnt vmcnt(0)"))
    stamp()
    E(raw(f"s_cmp_lg_u32 {sW}, 0")); E(raw("s_cbranch_scc1 L_end"))
    E(raw("s_mov_b64 exec, 1"))
    E(raw("s_lshl_b32 s96, s2, 7")); E(raw("v_mov_b32 v1, s96"))
    for k in range(stamp_n[0]):
        E(raw(f"v_mov_b32 v2, s{64+2*k}")); E(raw(f"v_mov_b32 v3, s{65+2*k}"))
        E(raw(f"buffer_store_dwordx2 v[2:3], v1, s[24:27], 0 offen offset:{k*8}")); E(raw("s_nop 1"))
    if not STEPS: E(raw(f"v_mov_b32 v2, {sCNT}")); E(raw(f"buffer_store_dwordx2 v[2:3], v1, s[24:27], 0 offen offset:120"))
g.label('L_end')
E(raw('s_endpgm'))
slow = ['L_flagslow:', raw("s_sleep 4"), raw(f"buffer_load_ubyte v14, v10, {sDBG}, {sFL} offen sc1"), raw("s_waitcnt vmcnt(0)"),
 raw(f"s_add_u32 {sCNT}, {sCNT}, 1"), raw(f"s_cmp_lt_u32 {sCNT}, 0x40000"), raw("s_cbranch_scc1 L_flagchk"), raw("s_branch L_flagok")]
new = []
for x in g.out:
    if not isinstance(x, str) and x.text == 'FLAGCHECK':
        new += [raw(f"s_mov_b32 {sCNT}, 0"), 'L_flagchk:', raw(f"v_readfirstlane_b32 {sT2}, v14"), raw("s_nop 3"),
                raw(f"s_cmp_eq_u32 {sT2}, 0"), raw("s_cbranch_scc1 L_flagslow"), 'L_flagok:']
    else: new.append(x)
g.out = new + slow + OOL
nbytes = align8(g)
print("stamps", stamp_n[0], "nops", g.nnop, "instrs", len(g.out), file=sys.stderr)
assert nbytes < 32768 + 128 * 128

K1 = NAME + "_kernel"
txt = f"""; generated by gen5.py
; @launch grid=(256,1,1) block=(256,1,1) lds=163840
.amdgcn_target "amdgcn-amd-amdhsa--gfx950"
.text
.globl {K1}
.p2align 8
.type {K1},@function
{K1}:
{g.text()}
.fill {(49152 + 256 - nbytes) // 4 + 64}, 4, 0xBF800000
.section .rodata,"a"
.p2align 6
.amdhsa_kernel {K1}
  .amdhsa_next_free_vgpr {256+236}
  .amdhsa_next_free_sgpr 102
  .amdhsa_accum_offset 256
  .amdhsa_group_segment_fixed_size 0
  .amdhsa_kernarg_size 104
  .amdhsa_user_sgpr_count 2
  .amdhsa_user_sgpr_kernarg_segment_ptr 1
  .amdhsa_system_sgpr_workgroup_id_x 1
.end_amdhsa_kernel
"""
open(out_path, 'w').write(txt)
```

```python
import re

def regs(spec):
    spec = spec.strip()
    if spec.startswith('-'): spec = spec[1:]
    m = re.fullmatch(r'([vas])\[(\d+):(\d+)\]', spec)
    if m: return [f"{m.group(1)}{i}" for i in range(int(m.group(2)), int(m.group(3)) + 1)]
    m = re.fullmatch(r'([vas])(\d+)', spec)
    if m: return [spec]
    if spec in ('vcc', 'exec', 'm0', 'scc'): return [spec]
    return []

def R(kind, base, n=1):
    return f"{kind}{base}" if n == 1 else f"{kind}[{base}:{base+n-1}]"

class I:
    __slots__ = ('text', 'cls', 'rd', 'wr', 'srcc', 'tag', 'cnt', 'sub', 'nstates')
    def __init__(self, text, cls, rd=(), wr=(), srcc=(), tag=None, cnt=None, sub=None, nstates=1):
        self.text = text; self.cls = cls; self.rd = set(rd); self.wr = set(wr); self.srcc = tuple(srcc)
        self.tag = tag; self.cnt = cnt; self.sub = sub; self.nstates = nstates

TRANS = ('v_exp_f32', 'v_rcp_f32', 'v_log_f32', 'v_rsq_f32', 'v_sqrt_f32')

def valu(op, dst, *srcs, extra=''):
    rd = []
    for s in srcs: rd += regs(s)
    wr = regs(dst)
    sub = None
    if op in TRANS: sub = 'trans'
    if op.startswith('v_permlane'):
        sub = 'permlane'; rd += wr; wr = wr + regs(srcs[0])
    if op.startswith('v_readfirstlane') or op.startswith('v_readlane'): sub = 'readlane'
    if op.startswith('v_fmac'): rd += wr
    if op.startswith('v_cndmask') and len(srcs) == 2: rd.append('vcc')
    return I(f"{op} {', '.join([dst] + list(srcs))}{extra}", 'valu', rd, wr, sub=sub)

def mfma(d, a, b, c, shape='16x16x32'):
    rc = regs(c)
    return I(f"v_mfma_f32_{shape}_bf16 {d}, {a}, {b}, {c}", 'mfma', regs(a) + regs(b) + rc, regs(d), srcc=rc)

def salu(op, dst, *srcs):
    rd = []
    for s in srcs: rd += regs(s)
    wr = regs(dst)
    if op.startswith('s_cmp'):
        rd += wr; wr = []
    return I(f"{op} {', '.join([dst] + list(srcs))}", 'salu', rd, wr)

def raw(text, cls='other', rd=(), wr=()):
    return I(text, cls, rd, wr)

def bload(dst, voff, srd, soff, off=0, tag=None, width=None, flags=''):
    n = len(regs(dst))
    op = {1: 'buffer_load_dword', 2: 'buffer_load_dwordx2', 4: 'buffer_load_dwordx4'}[n]
    o = f" offset:{off}" if off else ''
    return I(f"{op} {dst}, {voff}, {srd}, {soff} offen{o}{flags}", 'vmem', regs(voff) + regs(srd) + regs(soff), regs(dst), tag=tag, cnt='vm')

def bload_lds(voff, srd, soff, off=0, tag=None, flags=''):
    o = f" offset:{off}" if off else ''
    return I(f"buffer_load_dwordx4 {voff}, {srd}, {soff} offen{o}{flags} lds", 'vmem', regs(voff) + regs(srd) + regs(soff) + ['m0'], [], tag=tag, cnt='vm', sub='ldsdma')

def bstore(src, voff, srd, soff, off=0, tag=None, flags='', op=None):
    n = len(regs(src))
    op = op or {1: 'buffer_store_dword', 2: 'buffer_store_dwordx2', 4: 'buffer_store_dwordx4'}[n]
    o = f" offset:{off}" if off else ''
    return I(f"{op} {src}, {voff}, {srd}, {soff} offen{o}{flags}", 'vmem', regs(src) + regs(voff) + regs(srd) + regs(soff), [], tag=tag, cnt='vm',
             sub='widestore' if n >= 3 else 'store', srcc=regs(src))

def dsread(dst, addr, off=0, tag=None, op=None):
    n = len(regs(dst))
    op = op or {1: 'ds_read_b32', 2: 'ds_read_b64', 4: 'ds_read_b128'}[n]
    o = f" offset:{off}" if off else ''
    assert off < 65536
    return I(f"{op} {dst}, {addr}{o}", 'ds', regs(addr), regs(dst), tag=tag, cnt='lgkm')

def dswrite(addr, src, off=0, tag=None):
    n = len(regs(src))
    op = {1: 'ds_write_b32', 2: 'ds_write_b64', 4: 'ds_write_b128'}[n]
    o = f" offset:{off}" if off else ''
    assert off < 65536
    return I(f"{op} {addr}, {src}{o}", 'ds', regs(addr) + regs(src), [], tag=tag, cnt='lgkm')

class Wait:
    def __init__(self, *tags, vm0=False, lgkm0=False, cd=None):
        self.tags = tags; self.vm0 = vm0; self.lgkm0 = lgkm0; self.cd = cd

class Mark:
    def __init__(self, tag): self.tag = tag
class Label:
    def __init__(self, name): self.name = name

class Gen:
    def __init__(self):
        self.out = []
        self.vm = []
        self.lg = []
        self.vm_done = 0
        self.lg_done = 0
        self.hist = []
        self.pending = {}
        self.nnop = 0
        self.check_pending = True
        self.marks = {}
        self.autowait = False
        self.nlab = 0
    def label(self, name):
        self.out.append(name + ':')
    def barrier_hist(self):
        self.emit(I('s_nop 7', 'nop', nstates=8)); self.emit(I('s_nop 3', 'nop', nstates=4))
    def need(self, ins):
        need = 0
        dist = 0
        for p in reversed(self.hist):
            if dist >= 12: break
            req = 0
            if p.cls == 'valu':
                if ins.cls == 'mfma' and (p.wr & ins.rd): req = max(req, 2)
                if ins.cls == 'valu':
                    if p.sub == 'trans' and ins.sub != 'trans' and (p.wr & ins.rd): req = max(req, 1)
                    if p.sub == 'trans' and ins.sub == 'trans' and (p.wr & ins.rd): req = max(req, 1)
                    if ins.sub == 'permlane' and (p.wr & ins.rd): req = max(req, 2)
                    if ins.sub == 'readlane' and (p.wr & ins.rd): req = max(req, 1)
                    sw = {r for r in p.wr if r[0] == 's' or r == 'vcc'}
                    if sw & ins.rd: req = max(req, 2)
                    if 'exec' in p.wr: req = max(req, 4)
                if ins.cls == 'vmem':
                    sw = {r for r in p.wr if r[0] == 's'}
                    if sw & ins.rd: req = max(req, 5)
                if ins.cls == 'salu':
                    sw = {r for r in p.wr if r[0] == 's' or r == 'vcc'}
                    if sw & ins.rd: req = max(req, 2)
            elif p.cls == 'mfma':
                if ins.cls == 'mfma':
                    ab = ins.rd - set(ins.srcc)
                    if p.wr & ab: req = max(req, 8)
                    if p.wr & set(ins.srcc):
                        if set(ins.srcc) != p.wr: req = max(req, 6)
                    elif p.wr & ins.wr: req = max(req, 6)
                elif ins.cls in ('valu', 'vmem', 'ds'):
                    if p.wr & (ins.rd | ins.wr): req = max(req, 8)
                    if ins.cls == 'valu' and (set(p.srcc) & ins.wr): req = max(req, 3)
                    if ins.cls in ('vmem', 'ds') and (set(p.rd) & ins.wr): req = max(req, 0)
            elif p.cls == 'salu':
                if 'm0' in p.wr and 'm0' in ins.rd: req = max(req, 1)
            elif p.cls == 'vmem' and p.sub == 'widestore':
                if set(p.srcc) & ins.wr: req = max(req, 2)
            if req - dist > need: need = req - dist
            dist += p.nstates
        return need
    def emit(self, ins):
        if isinstance(ins, (list, tuple)):
            for x in ins: self.emit(x)
            return
        if isinstance(ins, Wait):
            self.wait(ins); return
        if isinstance(ins, Mark):
            self.marks[ins.tag] = len(self.vm); return
        if isinstance(ins, Label):
            self.label(ins.name); return
        if isinstance(ins, str):
            ins = raw(ins)
        if self.check_pending:
            for r in (ins.rd | ins.wr):
                if r in self.pending:
                    cnt, idx = self.pending[r]
                    done = self.vm_done if cnt == 'vm' else self.lg_done
                    if idx >= done:
                        if not self.autowait:
                            raise RuntimeError(f"register {r} used by '{ins.text}' while load outstanding ({cnt} #{idx})")
                        lst = self.vm if cnt == 'vm' else self.lg
                        mi = max(self.pending[q][1] for q in (ins.rd | ins.wr) if q in self.pending and self.pending[q][0] == cnt)
                        n = min(len(lst) - 1 - mi, 63 if cnt == 'vm' else 15)
                        w = I(f"s_waitcnt {'vmcnt' if cnt == 'vm' else 'lgkmcnt'}({n})", 'wait')
                        self.out.append(w); self.hist.append(w)
                        if cnt == 'vm': self.vm_done = max(self.vm_done, len(lst) - n)
                        else: self.lg_done = max(self.lg_done, len(lst) - n)
                    del self.pending[r]
        n = self.need(ins)
        while n > 0:
            k = min(n, 16)
            nop = I(f"s_nop {k-1}", 'nop', nstates=k)
            self.out.append(nop); self.hist.append(nop); self.nnop += 1
            n -= k
        self.out.append(ins); self.hist.append(ins)
        if len(self.hist) > 32: self.hist = self.hist[-16:]
        if ins.cnt == 'vm':
            self.vm.append(ins.tag)
            for r in ins.wr:
                if re.fullmatch(r'[va]\d+', r): self.pending[r] = ('vm', len(self.vm) - 1)
        elif ins.cnt == 'lgkm':
            self.lg.append(ins.tag)
            for r in ins.wr:
                if re.fullmatch(r'[va]\d+', r): self.pending[r] = ('lgkm', len(self.lg) - 1)
    def wait(self, w):
        parts = []
        vi = max([i for i, t in enumerate(self.vm) if t in w.tags], default=-1)
        li = max([i for i, t in enumerate(self.lg) if t in w.tags], default=-1)
        if w.vm0: vi = len(self.vm) - 1
        if w.lgkm0: li = len(self.lg) - 1
        force = False
        for t in w.tags:
            if t in self.marks:
                vi = max(vi, self.marks[t] - 1); force = True
            assert t in self.vm or t in self.lg or t in self.marks, f"unknown tag {t}"
        if w.cd is not None:
            sreg, extra = w.cd
            n = len(self.vm) - 1 - vi
            assert n + extra <= 63
            k = self.nlab; self.nlab += 1
            for x in (I(f"s_cmp_eq_u32 {sreg}, 0", 'salu'), I(f"s_cbranch_scc1 L_cda{k}", 'salu'), I(f"s_sub_u32 {sreg}, {sreg}, 1", 'salu'),
                      I(f"s_waitcnt vmcnt({n+extra})", 'wait'), I(f"s_branch L_cdb{k}", 'salu'), f"L_cda{k}:", I(f"s_waitcnt vmcnt({n})", 'wait'), f"L_cdb{k}:"):
                self.out.append(x)
            self.hist.append(I("s_nop 0", 'nop', nstates=3))
            self.vm_done = max(self.vm_done, len(self.vm) - n)
            return
        if vi >= self.vm_done or w.vm0 or force:
            n = min(len(self.vm) - 1 - vi, 63)
            parts.append(f"vmcnt({n})"); self.vm_done = max(self.vm_done, len(self.vm) - n)
        if li >= self.lg_done or w.lgkm0:
            n = min(len(self.lg) - 1 - li, 15)
            parts.append(f"lgkmcnt({n})"); self.lg_done = max(self.lg_done, len(self.lg) - n)
        if parts:
            ins = I("s_waitcnt " + " ".join(parts), 'wait')
            self.out.append(ins); self.hist.append(ins)
    def text(self):
        return "\n".join((x if isinstance(x, str) else "    " + x.text) for x in self.out) + "\n"

def interleave(main, fill, per=2, start=0):
    out = []; fill = list(fill)
    for k, m in enumerate(main):
        out.append(m)
        if k >= start:
            for _ in range(per):
                if fill: out.append(fill.pop(0))
    out += fill
    return out

import subprocess, tempfile, os
def sizes_of(lines):
    src = '.amdgcn_target "amdgcn-amd-amdhsa--gfx950"\n.text\n' + "\n".join(lines) + "\n"
    with tempfile.TemporaryDirectory() as d:
        open(d + "/a.s", "w").write(src)
        r = subprocess.run(["clang", "-x", "assembler", "-target", "amdgcn-amd-amdhsa", "-mcpu=gfx950", "-c", d + "/a.s", "-o", d + "/a.o"], capture_output=True, text=True)
        if r.returncode: raise RuntimeError(r.stderr[:3000])
        o = subprocess.run(["llvm-objdump", "-d", "--mcpu=gfx950", d + "/a.o"], capture_output=True, text=True).stdout
    sz = []
    for l in o.split("\n"):
        m = re.search(r"//\s*[0-9A-F]{12}:((?: [0-9A-F]{8})+)", l)
        if m: sz.append(4 * len(m.group(1).split()))
    return sz

WIDEN = ('v_add_f32', 'v_mul_f32', 'v_max_f32', 'v_mov_b32', 'v_exp_f32', 'v_rcp_f32', 'v_add_u32', 'v_xor_b32', 'v_and_b32',
         'v_lshlrev_b32', 'v_lshrrev_b32', 'v_sub_f32', 'v_or_b32', 'v_min_u32', 'v_max_u32')
def align8(g, verbose=True):
    lines = [(x if isinstance(x, str) else x.text) for x in g.out]
    sz = sizes_of(lines)
    insts = [x for x in g.out if not isinstance(x, str)]
    assert len(sz) == len(insts), (len(sz), len(insts))
    it = iter(sz)
    out = []; off = 0; cand = None; nw = nn = 0
    for x in g.out:
        if isinstance(x, str):
            out.append(x); continue
        s = next(it)
        if s == 8 and off % 8 == 4:
            if cand is not None:
                op, rest = cand.text.split(' ', 1)
                cand.text = op + '_e64 ' + rest; nw += 1
            else:
                out.append(I('s_nop 0', 'nop')); nn += 1
            off += 4
        if s == 8: cand = None
        elif s == 4 and off % 8 == 0 and x.cls == 'valu' and x.text.split(' ')[0] in WIDEN and not x.text.endswith('_dpp'): cand = x
        out.append(x); off += s
    g.out = out
    if verbose: print(f"align8: widened {nw}, nops {nn}, code bytes {off}")
    return off


def _cost(x):
    if isinstance(x, (Wait, Mark)): return 4
    if x.cls == 'mfma': return 8
    if x.cls == 'valu' and x.sub == 'trans': return 8
    return 4
def _lat(p, c, kind):
    if kind == 'raw':
        if p.cls == 'mfma':
            if c.cls == 'mfma' and set(c.srcc) == p.wr and not (p.wr & (c.rd - set(c.srcc))): return 16
            return 44
        if p.cls == 'ds': return 130
        if p.cls == 'vmem': return 600 if any(r[0] in 'va' for r in p.wr) else 4
        if p.cls == 'valu':
            if c.cls == 'mfma': return 12
            if c.cls == 'valu' and c.sub == 'permlane': return 12
            if p.sub == 'trans': return 12
            if c.cls in ('vmem', 'salu') and any(r[0] == 's' for r in p.wr): return 24
            return 4
        if p.cls == 'salu' and 'm0' in p.wr: return 8
        return 4
    if kind == 'waw':
        if p.cls == 'mfma': return 44
        return 4
    if p.cls == 'mfma' and c.cls == 'valu' and (set(p.srcc) & c.wr): return 20
    if p.cls == 'vmem' and p.sub == 'widestore': return 12
    return 4 if p.cls != 'mfma' else 8

DSW_GAP = 64
def schedule(seq, earliest=None, verbose=None):
    seq = [x for x in seq]
    n = len(seq)
    nodes = []
    for x in seq:
        if isinstance(x, Wait):
            y = I('WAIT', 'wait', rd=getattr(x, 'rd', ()), wr=getattr(x, 'wr', ())); y.tag = x
            nodes.append(y)
        else: nodes.append(x)
    preds = [[] for _ in range(n)]; succs = [[] for _ in range(n)]
    lastw = {}; readers = {}; lastmem = {}
    def edge(a, b, l):
        preds[b].append((a, l)); succs[a].append((b, l))
    for i, x in enumerate(nodes):
        rd = set(x.rd); wr = set(x.wr)
        if x.cls == 'salu': wr = wr | {'scc_'}
        for r in rd:
            if r in lastw: edge(lastw[r], i, _lat(nodes[lastw[r]], x, 'raw'))
        for r in wr:
            if r in lastw: edge(lastw[r], i, _lat(nodes[lastw[r]], x, 'waw'))
            for j in readers.get(r, []):
                if j != i: edge(j, i, _lat(nodes[j], x, 'war'))
        for r in rd: readers.setdefault(r, []).append(i)
        for r in wr: lastw[r] = i; readers[r] = []
        key = x.cnt if x.cnt else None
        if key:
            if key in lastmem: edge(lastmem[key], i, getattr(x, 'gap', 4) if False else 4)
            lastmem[key] = i
    prio = [0] * n
    for i in range(n - 1, -1, -1):
        prio[i] = _cost(nodes[i]) + max([l - _cost(nodes[i]) + prio[j] for j, l in succs[i]], default=0)
    npred = [len(p) for p in preds]
    hi = [False] * n
    for i in range(n - 1, -1, -1):
        if nodes[i].cls == 'valu' and getattr(nodes[i], 'tag', None) == 'setup': hi[i] = True
        if nodes[i].cls in ('other', 'wait') and earliest and earliest(seq[i]): hi[i] = True
    ready_t = [0] * n
    if earliest:
        for i, x in enumerate(seq):
            ready_t[i] = earliest(x) or 0
    avail = [i for i in range(n) if npred[i] == 0]
    t = 0; pipe = 0; out = []; dsw = 0
    isw = [x.cls == 'ds' and 'write' in x.text for x in nodes]
    while avail:
        for i in avail:
            if isw[i]: ready_t[i] = max(ready_t[i], dsw)
        cand = [i for i in avail if ready_t[i] <= t and (nodes[i].cls != 'mfma' or pipe <= t)]
        if not cand:
            t = min(max(ready_t[i], pipe if nodes[i].cls == 'mfma' else 0) for i in avail)
            continue
        mf = [i for i in cand if nodes[i].cls == 'mfma'] or [i for i in cand if nodes[i].cls in ('vmem', 'salu') or hi[i]]
        i = max(mf or cand, key=lambda k: (prio[k], -k))
        avail.remove(i); out.append(seq[i])
        if nodes[i].cls == 'mfma': pipe = t + 16
        if isw[i]: dsw = t + DSW_GAP
        for j, l in succs[i]:
            ready_t[j] = max(ready_t[j], t + l); npred[j] -= 1
            if npred[j] == 0: avail.append(j)
        t += _cost(nodes[i])
    if verbose: print(f"schedule[{verbose}]: {n} instrs, est {t} cycles")
    return out
```

```python
import sys, math, struct
from fw import *

NAME = "concat_heads__gqa_block_cached__gqa_block_cached__near_ridge"
STAMP = '--stamp' in sys.argv
def opt(name, default):
    for a in sys.argv:
        if a.startswith(f'--{name}='): return int(a.split('=')[1])
    return default
ROTMASK = opt('rotmask', 15)
NCLS = opt('ncls', 8)
KSP = opt('ksp', 1)
K0 = opt('k0', -1)
CLRD = opt('clrd', 2)
KREAD = opt('kread', 9)
V0 = 99; VSP = 0
VQ13 = opt('vq13', 2)
WB = opt('wb', 2)
PFCODE = opt('pfcode', 1); NOCLR = 1
NT = ' nt' if opt('nt', 1) else ''
STEPS = 'Q' if '--stepsQ' in sys.argv else ('O' if '--stepsO' in sys.argv else ('T' if '--stepsT' in sys.argv else ('A' if '--stepsA' in sys.argv else None)))
out_path = sys.argv[1]

g = Gen()
E = g.emit
sX, sK, sV, sWQ, sWO, sWS, sOUT, sDBG = 's[4:7]', 's[8:11]', 's[12:15]', 's[16:19]', 's[20:23]', 's[24:27]', 's[28:31]', 's[32:35]'
sP, sB, sHG, sW, sH, sROT = 's36', 's37', 's38', 's39', 's40', 's41'
sSEL = ['s42', 's43']; sC = 's44'
sKV = 's45'; sXB = 's46'
sT0, sT1, sT2, sT3 = 's47', 's48', 's49', 's50'
sWoff = 's51'; sWbase = 's52'; sVL = 's53'; sXM = 's54'
sGRP = 's55'; sIN = 's56'; sMASK = 's57'; sCNT = 's58'; sOUTB = 's59'; sPUB = 's60'; sCLS = 's61'; sCD = 's62'; sDONE = 's63'; sFL = 's3'; sFLG = 's100'
vL16, vBF, vBFr, vBc, vXs, vVs0, vVtr = 'v1', 'v2', 'v3', 'v4', 'v5', 'v6', 'v7'
vW = [f'v{8+j}' for j in range(8)]
RING, RN = 16, 3
PB = 112; ACC = 120; TMP = 248
vCol, vG = f'v{TMP+7}', f'v{TMP+6}'
vKs = [f'v{TMP+k}' for k in range(4)]
vVs1 = f'v{TMP+4}'; vKr = f'v{TMP+5}'; vTch = 'v1'
def acc(i, t): return R('v', ACC + (t * 8 + i) * 4, 4) if t < 4 else R('a', i * 4, 4)
def accr(i, t, r): return f'v{ACC + (t*8+i)*4 + r}' if t < 4 else f'a{i*4+r}'
XF, KF, VF, AONE = 32, 72, 152, 232
XLDS, VLDS = 0, 81920
INBOX = 1 << 20; FLAGS = 1 << 19
T = PB

stamp_n = [0]
def sstamp(ph):
    if STEPS != ph: return
    k = stamp_n[0]; stamp_n[0] += 1
    E(raw(f"s_memtime s[{64+2*k}:{65+2*k}]"))
def stamp():
    if not STAMP or STEPS: return
    k = stamp_n[0]; stamp_n[0] += 1
    E(raw("s_memrealtime s[96:97]")); E(raw("s_memtime s[98:99]")); E(raw("s_waitcnt lgkmcnt(0)"))
    g.lg_done = len(g.lg)
    E(raw(f"s_mov_b32 s{64+2*k}, s96")); E(raw(f"s_mov_b32 s{65+2*k}, s98"))
def flat(L):
    o = []
    for x in L:
        if isinstance(x, (list, tuple)): o += flat(x)
        else: o.append(x)
    return o
def flat1(L): return [y for x in L for y in x]
def split(L, n=3): return [L[k:k+n] for k in range(0, len(L), n)]
def weave(a, b):
    out = []; nb = len(b); na = len(a); j = 0
    for k, x in enumerate(a):
        while j < nb and j * na <= k * nb:
            out.append(b[j]); j += 1
        out.append(x)
    out += b[j:]
    return out

E(raw("s_cmp_ge_u32 s2, 256")); E(raw("s_cbranch_scc1 L_end"))
if STAMP: E(raw("s_memrealtime s[96:97]")); E(raw("s_memtime s[98:99]"))
E(raw("s_load_dwordx16 s[64:79], s[0:1], 0"))
E(raw("s_load_dwordx8 s[80:87], s[0:1], 64"))
E(raw("s_load_dwordx2 s[88:89], s[0:1], 96"))
if PFCODE == 1:
    E(raw("s_getpc_b64 s[90:91]", wr=['s90', 's91']))
    E(valu('v_lshlrev_b32', 'v8', '7', 'v0'))
    E(valu('v_mov_b32', 'v9', 's91'))
    E(raw("v_add_co_u32 v8, vcc, s90, v8", cls='valu', rd=['s90', 'v8'], wr=['v8', 'vcc']))
    E(raw("v_addc_co_u32 v9, vcc, 0, v9, vcc", cls='valu', rd=['v9', 'vcc'], wr=['v9', 'vcc']))
    E(I("global_load_dword v112, v[8:9], off", 'vmem', ['v8', 'v9'], ['v112'], tag='PF', cnt='vm'))
    E(raw("v_add_co_u32 v8, vcc, 0x8000, v8", cls='valu', rd=['v8'], wr=['v8', 'vcc']))
    E(raw("v_addc_co_u32 v9, vcc, 0, v9, vcc", cls='valu', rd=['v9', 'vcc'], wr=['v9', 'vcc']))
    E(raw("v_cmp_gt_u32 vcc, 128, v0", cls='valu', rd=['v0'], wr=['vcc']))
    E(raw("s_nop 1")); E(raw("s_and_saveexec_b64 s[92:93], vcc")); E(raw("s_cbranch_execz L_pf"))
    E(raw("global_load_dword v113, v[8:9], off"))
    g.label('L_pf')
    E(raw("s_mov_b64 exec, s[92:93]"))
pf2 = []
if PFCODE >= 2:
    pf2 = [raw("s_getpc_b64 s[90:91]", wr=['s90', 's91']), raw("s_lshr_b32 s92, s2, 3"), raw("s_mul_i32 s93, s92, 43"), raw("s_lshr_b32 s93, s93, 9"),
           raw("s_mul_i32 s93, s93, 12"), raw("s_sub_u32 s92, s92, s93"), raw("s_lshl_b32 s92, s92, 12"), raw("s_add_u32 s90, s90, s92"), raw("s_addc_u32 s91, s91, 0"),
           raw("s_and_b32 s90, s90, 0xffffff80"),
           valu('v_lshlrev_b32', 'v116', '4', 'v0'), valu('v_mov_b32', 'v117', 's91'),
           raw("v_add_co_u32 v116, vcc, s90, v116", cls='valu', rd=['s90', 'v116'], wr=['v116', 'vcc']),
           raw("v_addc_co_u32 v117, vcc, 0, v117, vcc", cls='valu', rd=['v117', 'vcc'], wr=['v117', 'vcc']),
           I("global_load_dwordx4 a[236:239], v[116:117], off", 'vmem', ['v116', 'v117'], ['a236', 'a237', 'a238', 'a239'], tag='PF', cnt='vm')]
    E(pf2)
E(salu('s_and_b32', sP, 's2', '1'))
E(salu('s_lshr_b32', sT0, 's2', '1')); E(salu('s_and_b32', sT0, sT0, '3'))
E(salu('s_lshr_b32', sT1, 's2', '3'))
E(salu('s_and_b32', sT2, sT1, '1'))
E(salu('s_lshl_b32', sHG, sT0, '1')); E(salu('s_add_u32', sHG, sHG, sT2))
E(salu('s_lshr_b32', sB, sT1, '1'))
E(valu('v_lshrrev_b32', 'v8', '6', 'v0'))
E(valu('v_and_b32', 'v0', '63', 'v0'))
E(valu('v_readfirstlane_b32', sW, 'v8'))
E(valu('v_lshrrev_b32', vG, '4', 'v0'))
E(valu('v_and_b32', 'v10', '15', 'v0'))
E(valu('v_lshlrev_b32', vTch, '7', 'v0'))
E(valu('v_xor_b32', 'v11', 'v10', vG))
E(valu('v_lshlrev_b32', 'v11', '4', 'v11'))
E(valu('v_lshl_add_u32', vBF, 'v10', '8', 'v11'))
E(salu('s_and_b32', sROT, sB, str(ROTMASK)))
E(salu('s_and_b32', sT0, sROT, '3')); E(salu('s_lshl_b32', sT0, sT0, '6'))
E(valu('v_xor_b32', vBFr, sT0, vBF))
E(valu('v_lshl_add_u32', vXs, vG, '10', 'v11'))
E(salu('s_mul_i32', sT0, sW, str(4096 + 64)))
E(valu('v_xor_b32', vXs, sT0, vXs))
E(valu('v_lshlrev_b32', vCol, '4', 'v10'))
E(salu('s_lshl_b32', sH, sHG, '2')); E(salu('s_add_u32', sH, sH, sW))
E(salu('s_mul_i32', sXB, sB, '81920'))
E(salu('s_lshr_b32', sT0, sROT, '2')); E(salu('s_lshl_b32', sT0, sT0, '8')); E(salu('s_add_u32', sXB, sXB, sT0))
E(salu('s_lshl_b32', sXM, sW, '10'))
E(salu('s_lshl_b32', sWbase, sH, '8')); E(salu('s_lshl_b32', sT0, sROT, '18')); E(salu('s_add_u32', sWbase, sWbase, sT0))
late = []
A = late.append
t12, t13, c_ = 'v114', 'v115', 'v116'
A(valu('v_and_b32', c_, '15', 'v0'))
A(valu('v_lshlrev_b32', t12, '2', vG)); A(valu('v_xor_b32', t12, t12, c_)); A(valu('v_lshlrev_b32', t12, '4', t12))
A(valu('v_lshl_add_u32', vKs[0], vG, '8', t12))
for v in range(1, 4): A(valu('v_xor_b32', vKs[v], str(v * 16), vKs[0]))
A(valu('v_and_b32', t12, '3', c_)); A(valu('v_xor_b32', t12, t12, vG)); A(valu('v_lshrrev_b32', t13, '2', c_))
A(valu('v_lshl_add_u32', t12, t12, '2', t13)); A(valu('v_lshlrev_b32', t12, '4', t12)); A(valu('v_lshl_add_u32', vKr, c_, '8', t12))
A(valu('v_lshrrev_b32', t12, '1', c_)); A(valu('v_xor_b32', t12, t12, vG)); A(valu('v_lshlrev_b32', t12, '5', t12))
A(valu('v_and_b32', t13, '1', c_)); A(valu('v_lshl_add_u32', t12, t13, '4', t12)); A(valu('v_lshl_add_u32', vVs0, vG, '8', t12))
A(valu('v_xor_b32', vVs1, '128', vVs0))
A(valu('v_lshrrev_b32', t12, '2', 'v0')); A(valu('v_and_b32', t13, '7', t12)); A(valu('v_lshlrev_b32', t13, '5', t13))
A(valu('v_lshl_add_u32', t13, t12, '8', t13)); A(valu('v_and_b32', t12, '3', 'v0')); A(valu('v_lshl_add_u32', vVtr, t12, '3', t13))
A(salu('s_mov_b32', sSEL[0], '0x05040100')); A(salu('s_mov_b32', sSEL[1], '0x07060302'))
cval = (128 ** -0.5) * math.log2(math.e)
A(salu('s_mov_b32', sC, hex(struct.unpack('<I', struct.pack('<f', cval))[0])))
A(salu('s_lshl_b32', sKV, sB, '5')); A(salu('s_add_u32', sKV, sKV, sH)); A(salu('s_mul_i32', sKV, sKV, '20480'))
A(salu('s_mul_i32', sVL, sW, '20480')); A(salu('s_add_u32', sVL, sVL, str(VLDS)))
A(valu('v_add_u32', vVtr, sVL, vVtr)); A(valu('v_add_u32', vKr, sVL, vKr))
A(salu('s_lshl_b32', sGRP, sP, '4')); A(salu('s_add_u32', sGRP, sGRP, sB))
A(salu('s_and_b32', sCLS, sB, str(NCLS - 1))); A(salu('s_mov_b32', sCD, '0'))
A(salu('s_lshl_b32', sIN, sGRP, '3')); A(salu('s_add_u32', sIN, sIN, sHG)); A(salu('s_lshl_b32', sIN, sIN, '2')); A(salu('s_add_u32', sIN, sIN, sW))
A(salu('s_mul_i32', sIN, sIN, '20480')); A(salu('s_add_u32', sIN, sIN, str(INBOX)))
A(salu('s_lshl_b32', sFL, sGRP, '2')); A(salu('s_add_u32', sFL, sFL, sW))
A(salu('s_lshl_b32', sFLG, sFL, '8')); A(salu('s_add_u32', sFLG, sFLG, str(FLAGS)))
A(valu('v_mov_b32', t12, '0')); A(valu('v_lshlrev_b32', t13, '2', 'v0'))
A(raw(f"s_cmp_lg_u32 {sHG}, 0")); A(raw("s_cbranch_scc1 L_nc"))
A(raw(f"buffer_store_dword {t12}, {t13}, {sWS}, {sFLG} offen sc1"))
A(Label('L_nc'))
A(valu('v_accvgpr_write_b32', f'a{AONE}', '1'))
E(valu('v_lshl_add_u32', vW[0], vG, '16', vCol))
for j in range(1, 8): E(valu('v_add_u32', vW[j], str(8192 * j), vW[0]))
E(raw("s_waitcnt lgkmcnt(0)"))
E(raw(f"s_cmp_eq_u32 {sP}, 0"))
def srd(base, pa, pb, size):
    E(raw(f"s_cselect_b32 s{base}, s{pa}, s{pb}")); E(raw(f"s_cselect_b32 s{base+1}, s{pa+1}, s{pb+1}"))
    E(raw(f"s_mov_b32 s{base+2}, {size}")); E(raw(f"s_mov_b32 s{base+3}, 0x00020000"))
srd(4, 64, 74, 1310720); srd(16, 70, 80, 4194304)

def xdma(n):
    L = [salu('s_xor_b32', sT0, sXB, str(n * 256))]
    for t in range(5):
        L.append(salu('s_add_u32', 'm0', sXM, str(XLDS + n * 20480 + t * 4096)))
        L.append(salu('s_add_u32', sT2, sT0, str(t * 16384)))
        L.append(bload_lds(vXs, sX, sT2, tag=f'X{n}'))
    return L
def wq_soff(i): return [salu('s_xor_b32', sWoff, sWbase, str(i << 18))]
def wq_load(i, j): return bload(R('v', RING + (i % RN) * 32 + j * 4, 4), vW[j], sWQ, sWoff, tag=f'Q{i}')
def wo_soff(i): return [salu('s_xor_b32', sWoff, sWbase, str(i << 15))]
def wo_load(i, j): return bload(R('v', RING + ((i + 1) % RN) * 32 + j * 4, 4), vW[j >> 2], sWO, sWoff, off=(j & 3) * 1024, tag=f'O{i}')
def kvquad(kind, u):
    srd_ = sK if kind == 'K' else sV
    L = [salu('s_add_u32', sT3, sKV, str(u * 4096)), salu('s_add_u32', 'm0', sVL, str(u * 4096))]
    for v in range(4):
        va = vKs[v] if kind == 'K' else (vVs1 if v & 1 else vVs0)
        L.append(bload_lds(va, srd_, sT3, off=v * 1024, flags=NT if (kind == 'K' or not TV) else ''))
    return L
def clear():
    L = []
    for t in range(5):
        L.append(salu('s_add_u32', sT1, sIN, str(t * 4096)))
        for k in range(4): L.append(bstore(R('a', AONE, 4), vL16, sWS, sT1, off=k * 1024, flags=' sc1'))
    return L
OOL = []
TWO = opt('two', 0); TV = opt('tv', 0)
NTOUCH = TWO + TV
def touches():
    L = []
    if TWO:
        L += [salu('s_lshl_b32', sT3, sHG, '19'), salu('s_lshl_b32', sT1, sB, '15'), salu('s_add_u32', sT3, sT3, sT1), salu('s_lshl_b32', sT1, sW, '13'), salu('s_add_u32', sT3, sT3, sT1),
              bload(f'a{AONE+2}', vTch, sWO, sT3)]
    for k in range(TV):
        L += [salu('s_add_u32', sT3, sKV, str(min(k * 8192, 20480 - 8192))), bload(f'a{AONE+2}', vTch, sV, sT3)]
    return L
def site(kind, cls, cd=2):
    if cls < 0 or cls >= NCLS: return []
    name = f'{kind}{cls}'
    h = Gen(); h.check_pending = False
    h.label(f'L_o{name}')
    h.emit(clear() if kind == 'C' else flat([kvquad(kind, u) for u in range(5)]))
    if kind == 'K': h.emit(touches())
    h.emit(raw(f's_mov_b32 {sCD}, {cd}')); h.emit(raw(f's_branch L_r{name}'))
    OOL.extend(h.out)
    return [raw(f's_cmp_eq_u32 {sCLS}, {cls}'), raw(f's_cbranch_scc1 L_o{name}'), Label(f'L_r{name}')]
def sites_at(i, cd=2):
    L = []
    for c in range(NCLS):
        if K0 + c * KSP == i: L += site('K', c, cd)
        if K0 + c * KSP + CLRD == i and not NOCLR: L += site('C', c, cd)
        if V0 + c * VSP == i: L += site('V', c, cd)
    return L
def kreads():
    L = []
    for r in range(4):
        grp = [valu('v_xor_b32', vKs[r], str(r * 16), vKr)]
        for u in range(5):
            grp.append(dsread(R('a', KF + (u * 4 + r) * 4, 4), vKs[r], u * 4096, tag='KF'))
            L.append(grp); grp = []
    return L
def baddr(i): return valu('v_xor_b32', vBc, str(XLDS + (i & 3) * 64 + (i >> 2) * 20480), vBFr)
def bfrag(i, t): return R('a', XF + (i % 2) * 20 + t * 4, 4)
def bfrag_read(ph, i, t): return dsread(bfrag(i, t), vBc, t * 4096, tag=f'{ph}B{i}')
ROFF = [0]
def perm(i, tile, q, dst=None):
    lo = RING + ((i + ROFF[0]) % RN) * 32 + (2 * q) * 4 + (tile >> 1)
    d = PB + (tile % 2) * 4 + q if dst is None else dst + tile * 4 + q
    return valu('v_perm_b32', f'v{d}', f'v{lo+4}', f'v{lo}', sSEL[tile % 2])

def gemm(ph, soff_f, load_f, extra, pre_issued, barrier_at, tail_fill, sites=None, ex13=(), ex14=(), ex15=(), accf=None, zero=(0,), tail=None, bmask=15):
    accf = accf or (lambda n, i, t: acc(i, t))
    cd = (sCD, 20 + NTOUCH) if sites else None
    def WW(i): return Wait(f'{ph}{i}', cd=cd if i <= K0 + (NCLS - 1) * KSP + 2 else None)
    E(WW(0))
    for q in range(4): E(perm(0, 0, q))
    F14 = RING + ((13 + ROFF[0]) % RN) * 32
    held = []; HOLD = opt('hold', 1); NOST = (12,) if opt('nost12', 1) else ()
    ng = 8 // WB
    for i in range(14):
        sstamp(ph)
        ex = list(extra.get(i, []))
        for tile in range(8):
            fill = [[] for _ in range(5)]
            ni, nt = (i, tile + 1) if tile < 7 else (i + 1, 0)
            if ni < 14:
                if nt == 0: fill[0].append(WW(ni))
                fill[0] += [perm(ni, nt, 0), perm(ni, nt, 1)]
                fill[1] += [perm(ni, nt, 2), perm(ni, nt, 3)]
            li, gi = (i + RN, 0) if tile == 7 else (i - 1 + RN, tile + 1)
            if pre_issued <= li < 16 and gi < ng:
                if gi == 0: fill[2] += soff_f(li)
                for k in range(WB): fill[2 + (k * 2) // WB].append(load_f(li, gi * WB + k))
            if tile < 5:
                if tile == 0:
                    if barrier_at == i: fill[4].append(raw('s_barrier'))
                    fill[4].append(baddr((i + 1) & bmask))
                fill[4].append(bfrag_read(ph, i + 1, tile))
            if sites and tile == ng - 1:
                st = sites(i)
                fill[2] += st
            if i == 13 and tile == ng - 1: ex += list(ex13)
            if ex:
                k = (len(ex) + (7 - tile)) // (8 - tile)
                for kk in range(k):
                    it = ex.pop(0)
                    if HOLD and it and not isinstance(it[0], Wait) and (it[0].tag or '').startswith('PS') and (tile < ng - 1 or tile == 7 or i in NOST):
                        held.append(it[0]); continue
                    fill[2 + (kk * 3) // k] += it
            if held and ng - 1 <= tile < 7 and i not in NOST:
                fill[2] = held + fill[2]; held = []
            if i == 13 and tile == 7:
                fill[0] += [WW(14)] + [perm(14, 0, q, F14) for q in range(2)]
                fill[1] += [perm(14, 0, q, F14) for q in range(2, 4)]
                fill[2] += [perm(14, 1, q, F14) for q in range(2)]
                fill[3] += [perm(14, 1, q, F14) for q in range(2, 4)]
                fill[4] += [perm(14, 2, q, F14) for q in range(2)]
            if tile == 0: E(Wait(f'{ph}B{i}'))
            for t in range(5):
                a_ = accf(i, tile, t)
                E(mfma(a_, R('v', PB + (tile % 2) * 4, 4), bfrag(i, t), '0' if i in zero else a_))
                E(fill[t])
    E(held)
    F15 = RING + ((14 + ROFF[0]) % RN) * 32
    p14 = [perm(14, 2, q, F14) for q in range(2, 4)] + [perm(14, tl, q, F14) for tl in range(3, 8) for q in range(4)]
    p15 = [WW(15)] + [perm(15, tl, q, F15) for tl in range(8) for q in range(4)]
    b15 = [baddr(15 & bmask)] + [bfrag_read(ph, 15, t) for t in range(5)]
    sstamp(ph)
    E(Wait(f'{ph}B14'))
    def M(i, tile, t):
        F = F14 if i == 14 else F15
        return mfma(accf(i, tile, t), R('v', F + tile * 4, 4), bfrag(i, t), accf(i, tile, t))
    if tail:
        tail(M, p14, p15[1:], b15); sstamp(ph); return
    seq1 = [M(14, tl, t) for tl in range(8) for t in range(3)]
    fill1 = b15[:3] + p14[:2] + b15[3:] + p14[2:] + list(ex14) + p15
    E(interleave(seq1, fill1[:48], per=2))
    rest = fill1[48:]
    E(Wait(f'{ph}B15'))
    E(interleave([M(14, tl, 3) for tl in range(8)], rest, per=2))
    order = [('a', 0), ('a', 1), ('b', 4), ('a', 2), ('a', 3), ('a', 4)]
    pend = list(ex15)
    for kind, t in order:
        seq = [M(15 if kind == 'a' else 14, tl, t) for tl in range(8)]
        E(interleave(seq, pend[:14], per=2, start=1)); pend = pend[14:]
        if kind == 'a': pend = pend + tail_fill(t)
    E(pend)
    sstamp(ph)

E(xdma(0))
E(wq_soff(0))
for j in range(8): E(wq_load(0, j))
E(wq_soff(1))
for j in range(8): E(wq_load(1, j))
E(raw(f"s_cmp_eq_u32 {sP}, 0"))
srd(8, 66, 76, 10485760); srd(12, 68, 78, 10485760); srd(20, 72, 82, 4194304)
srd(24, 88, 88, 268435456); srd(28, 84, 84, 2621440); srd(32, 86, 86, 256)
if STAMP and not STEPS:
    E(raw("s_mov_b32 s64, s96")); E(raw("s_mov_b32 s65, s98")); stamp_n[0] = 1
E(late)
E(baddr(0))
E(Wait('X0')); E(raw('s_barrier'))
for t in range(5): E(bfrag_read('Q', 0, t))
E(wq_soff(2))
for j in range(8): E(wq_load(2, j))
E(sites_at(-1, cd=3))
stamp()
extra = {i: [] for i in range(14)}
for n in (1, 2, 3):
    x = xdma(n); extra[0] += [x[:4]] + split(x[4:])
extra[KREAD] += kreads()
assert K0 + (NCLS - 1) * KSP + 3 <= KREAD and KREAD < 13
def vq(u):
    L = kvquad('V', u)
    for x in L:
        if x.cls == 'vmem': x.tag = 'V'
    return [L[:3]] + [[x] for x in L[3:]]
v13 = [[Wait('KF')]] + flat1([vq(u) for u in range(VQ13)])
vrest = [vq(u) for u in range(VQ13, 5)]


def cvt_unit(dst, t, r, tb=T):
    L = []
    for m in range(4):
        if t < 4:
            L.append(valu('v_cvt_pk_bf16_f32', f'v{dst + m}', accr(2*m, t, r), accr(2*m+1, t, r)))
        else:
            t0, t1 = f'v{tb + (m % 2) * 2}', f'v{tb + (m % 2) * 2 + 1}'
            L.append(valu('v_accvgpr_read_b32', t0, accr(2*m, t, r)))
            L.append(valu('v_accvgpr_read_b32', t1, accr(2*m+1, t, r)))
            L.append(valu('v_cvt_pk_bf16_f32', f'v{dst + m}', t0, t1))
    return L
sig = [[valu('v_mov_b32', 'v5', '0'), valu('v_mov_b32', f'v{T}', '1') if False else raw('s_nop 0'),
        raw(f"s_cmp_lg_u32 {sHG}, 0"), raw("s_cbranch_scc1 L_nf"), raw("s_mov_b64 exec, 1"),
        raw(f"buffer_store_byte a{AONE}, v5, {sDBG}, {sFL} offen sc1"), raw("s_mov_b64 exec, -1"), Label('L_nf')]]
v13 = sig + v13

wo_pre = [valu('v_lshl_add_u32', vW[0], vG, '12', vCol), valu('v_add_u32', vW[1], '16384', vW[0]),
          salu('s_lshl_b32', sWbase, sHG, '19'), salu('s_lshl_b32', sT0, sW, '8'), salu('s_add_u32', sWbase, sWbase, sT0),
          salu('s_lshl_b32', sT0, sROT, '15'), salu('s_add_u32', sWbase, sWbase, sT0)]
def wo_batch(i): return wo_soff(i) + [wo_load(i, j) for j in range(8)]

QF = [16, 32, 16, 32, 16]
SB = [120, 152]
PF = [140, 172, 184, 194, 204]
OB = [216, 232]
def cq(t): return flat([cvt_unit(QF[t] + r * 4, t, r, tb=12) for r in range(4)])
def qk(t):
    L = []
    for r in range(4):
        for u in range(5):
            d = R('v', SB[t % 2] + u * 4, 4)
            L.append(mfma(d, R('a', KF + (u * 4 + r) * 4, 4), R('v', QF[t] + r * 4, 4), '0' if r == 0 else d))
    return L
def softmax(t):
    s = [f'v{SB[t % 2] + k}' for k in range(20)]
    tb = T + (t % 2) * 4
    m, t1, sm, sm2 = f'v{tb}', f'v{tb+1}', f'v{tb+2}', f'v{tb+3}'
    L = [valu('v_max3_f32', m, s[0], s[1], s[2]), valu('v_max3_f32', t1, s[3], s[4], s[5])]
    for k in range(6, 18, 4):
        L.append(valu('v_max3_f32', m, m, s[k], s[k+1])); L.append(valu('v_max3_f32', t1, t1, s[k+2], s[k+3]))
    L.append(valu('v_max3_f32', m, m, s[18], s[19]))
    L.append(valu('v_max_f32', m, m, t1))
    for op in ('v_permlane32_swap_b32', 'v_permlane16_swap_b32'):
        L.append(valu('v_mov_b32', t1, m)); L.append(valu(op, m, t1)); L.append(valu('v_max_f32', m, m, t1))
    L.append(valu('v_mul_f32', m, sC, m))
    for k in range(20): L.append(valu('v_fma_f32', s[k], s[k], sC, '-' + m))
    for k in range(20): L.append(valu('v_exp_f32', s[k], s[k]))
    L.append(valu('v_add_f32', sm, s[0], s[1])); L.append(valu('v_add_f32', sm2, s[2], s[3]))
    for k in range(4, 20, 2):
        L.append(valu('v_add_f32', sm, sm, s[k])); L.append(valu('v_add_f32', sm2, sm2, s[k+1]))
    L.append(valu('v_add_f32', sm, sm, sm2))
    for op in ('v_permlane32_swap_b32', 'v_permlane16_swap_b32'):
        L.append(valu('v_mov_b32', sm2, sm)); L.append(valu(op, sm, sm2)); L.append(valu('v_add_f32', sm, sm, sm2))
    L.append(valu('v_rcp_f32', sm, sm))
    for k in range(20): L.append(valu('v_mul_f32', s[k], s[k], sm))
    for k in range(10): L.append(valu('v_cvt_pk_bf16_f32', f'v{PF[t] + k}', s[2*k], s[2*k+1]))
    return L
VT = opt('vt', 4400); WT = [opt('wt0', 4600), opt('wt1', 5200), opt('wt2', 5800)]
VG = opt('vgap', 110)
early = {}
def at(L, t0, dt=0):
    for k, x in enumerate(L): early[id(x)] = t0 + k * dt
    return L
vr = flat(vrest)
for x in vr:
    if x.cls == 'vmem': x.wr.add('Vq')
wV = Wait('V'); wV.rd = {'Vq'}; wV.wr = {'Vready'}; early[id(wV)] = VT
vTa = ['v10', 'v11']
def vreads():
    L = []
    for i in range(8):
        L.append(valu('v_xor_b32', vTa[i % 2], str(i * 32), vVtr))
        for u in range(5):
            d = dsread(R('a', VF + i * 10 + u * 2, 2), vTa[i % 2], u * 4096, tag='VF', op='ds_read_b64_tr_b16'); d.rd.add('Vready')
            L.append(d)
    return L
vOw = [f'v{TMP+y}' for y in range(4)]
osetup = [salu('s_lshr_b32', sT0, sROT, '2'), salu('s_xor_b32', sT0, sT0, sW), salu('s_mul_i32', sT0, sT0, '20480'), valu('v_add_u32', vOw[0], sT0, vBF)]
osetup += [valu('v_xor_b32', vOw[y], str(y * 64), vOw[0]) for y in range(1, 4)]
def pvh(t, hf):
    ob = OB[hf]
    L = []
    for z in range(3):
        for q in range(4):
            i = 4 * hf + q
            d = R('v', ob + q * 4, 4)
            if z < 2: L.append(mfma(d, R('a', VF + i * 10 + z * 4, 4), R('v', PF[t] + z * 4, 4), '0' if z == 0 else d))
            else: L.append(mfma(d, R('a', VF + i * 10 + 8, 2), R('v', PF[t] + 8, 2), d, shape='16x16x16'))
    for yy in range(2):
        b0 = ob + yy * 8
        for k in range(4): L.append(valu('v_cvt_pk_bf16_f32', f'v{b0+k}', f'v{b0+2*k}', f'v{b0+2*k+1}'))
        w = dswrite(vOw[2 * hf + yy], R('v', b0, 4), XLDS + t * 4096, tag='OW'); w.rd.add('xfree')
        L.append(w)
    return L
flagld = I(f'buffer_load_ubyte a{AONE+1}, v5, {sDBG}, {sFL} offen sc1', 'vmem', ['v5'], [f'a{AONE+1}'], tag='FL', cnt='vm')
def qtail(M, p14, p15, b15):
    stamp()
    at(p15, opt('p15t', 200))
    for x in b15[1:]: x.wr.add('b15r')
    wx = Wait('QB15'); wx.rd = {'b15r'}; wx.wr = {'b15d'}
    bx = I('s_barrier', 'other', ['b15d'], ['xfree']); early[id(bx)] = opt('xbar', 2500); early[id(wx)] = opt('xbar', 2500)
    for x in wo_pre + osetup: x.tag = 'setup'
    L = b15 + p14 + p15 + at(vr, 100, VG) + wo_pre + osetup
    for t in range(5): L += [M(14, tl, t) for tl in range(8)] + [M(15, tl, t) for tl in range(8)]
    L += [wx, bx]
    L += cq(0) + qk(0) + cq(1) + qk(1) + cq(2) + cq(3) + softmax(0) + qk(2) + cq(4) + softmax(1) + qk(3) + softmax(2) + qk(4)
    L += [wV] + vreads() + at(wo_batch(0), WT[0], 40) + at(wo_batch(1), WT[1], 40) + at(wo_batch(2), WT[2], 40) + at([flagld], WT[2]) + softmax(3) + softmax(4)
    for t in range(5): L += pvh(t, 0) + pvh(t, 1)
    S = schedule(L, earliest=lambda x: early.get(id(x)), verbose='att')
    g.autowait = True
    if STEPS == 'A':
        for k in range(15):
            sstamp('A'); E(S[len(S) * k // 15: len(S) * (k + 1) // 15])
        sstamp('A')
    else: E(S)
    g.autowait = False
gemm('Q', wq_soff, wq_load, extra, 3, 3, None, sites=sites_at, ex13=v13, tail=qtail)
stamp()
E(baddr(0))
E(Wait('OW')); E(raw('s_barrier'))
for t in range(5): E(bfrag_read('O', 0, t))
stamp()
ROFF[0] = 1
vPub = ['v12', 'v13']; vGa = ['v14', 'v15']; vOut, vOut2, vPoll = 'v10', 'v11', 'v6'; sMYF = 's101'
sPB = [sPUB, sCLS, sCD, sKV, sC]; sRM = 's[90:91]' if not STEPS else 's[96:97]'; vBig = 'v7'
OWN = opt('own', 1)
gsetup = [salu('s_mov_b32', sT2, '163840'), valu('v_mul_lo_u32', vPub[0], vG, sT2), valu('v_add_u32', vPub[0], vCol, vPub[0]), valu('v_add_u32', vPub[1], '81920', vPub[0]),
  salu('s_mul_i32', sPUB, sGRP, '655360'), salu('s_mul_i32', sT2, sW, '20480'), salu('s_add_u32', sPUB, sPUB, sT2),
  salu('s_lshl_b32', sT2, sHG, '8'), salu('s_add_u32', sPUB, sPUB, sT2), salu('s_add_u32', sPUB, sPUB, str(INBOX))]
gsetup += [salu('s_add_u32', sPB[k], sPUB, str(k * 4096)) for k in range(1, 5)]
gsetup += [salu('s_mov_b32', sMASK, '0xffff0000'),
  valu('v_lshlrev_b32', vOut, '7', vCol), valu('v_lshrrev_b32', vBig, '1', vG), valu('v_lshl_add_u32', vOut2, vBig, '4', vOut),
  valu('v_lshl_add_u32', vOut, vBig, '15', vOut), valu('v_and_b32', vBig, '1', vG), valu('v_lshl_add_u32', vOut, vBig, '4', vOut),
  salu('s_mul_i32', sOUTB, sB, str(80 * 2048)), salu('s_lshl_b32', sT0, sP, '10'), salu('s_add_u32', sOUTB, sOUTB, sT0),
  salu('s_lshl_b32', sT0, sW, '8'), salu('s_add_u32', sOUTB, sOUTB, sT0), salu('s_lshl_b32', sT0, sHG, '5'), salu('s_add_u32', sOUTB, sOUTB, sT0),
  valu('v_min_u32', vPoll, '39', 'v0'), valu('v_lshlrev_b32', vPoll, '2', vPoll),
  salu('s_lshl_b32', sT0, sHG, '2'), salu('s_add_u32', sMYF, sFLG, sT0),
  valu('v_lshlrev_b32', vGa[0], '4', 'v0'), valu('v_add_u32', vGa[1], '1024', vGa[0]), valu('v_mov_b32', vBig, '0x40000000')]
def cmpsel(dst, lhs_mul, lhs_add):
    t_ = f'v{TMP}'
    return [valu('v_lshlrev_b32', t_, str(lhs_mul), vG), valu('v_add_u32', t_, str(lhs_add), t_),
            raw(f"v_cmp_eq_u32 vcc, {sHG}, {t_}", cls='valu', rd=[t_, sHG], wr=['vcc']),
            raw(f"v_cndmask_b32 {dst}, {dst}, {vBig}, vcc", cls='valu', rd=[dst, vBig, 'vcc'], wr=[dst])]
gs2 = []
if OWN:
    gs2 = [cmpsel(vPub[0], 1, 0), cmpsel(vPub[1], 1, 1), cmpsel(vGa[0], 0, 0), cmpsel(vGa[1], 0, 4),
           [salu('s_lshr_b32', sT0, sHG, '1'), raw(f"v_cmp_eq_u32 {sRM}, {sT0}, {vG}", cls='valu', rd=[sT0, vG], wr=regs(sRM))]]
PUBR = RING + ((15 + 1) % RN) * 32
pk = [0]
def publish(t):
    L = []
    for r in range(4):
        d = PUBR + (pk[0] % 8) * 4; pk[0] += 1
        L += cvt_unit(d, t, r)
        L.append(bstore(R('v', d, 4), vPub[r >> 1], sWS, sPB[t], off=(r & 1) * 2048, tag=f'PS{t}', flags=' sc1'))
    return L
def otail(M, p14, p15, b15):
    ea = {}
    for x in p15: ea[id(x)] = opt('p15t', 200)
    L = b15 + p14 + p15
    for t in range(5): L += [M(14, tl, t) for tl in range(8)] + [M(15, tl, t) for tl in range(8)]
    for t in range(5): L += publish(t)
    S = schedule(L, earliest=lambda x: ea.get(id(x)), verbose='otail')
    g.autowait = True
    E(S)
    g.autowait = False
gemm('O', wo_soff, wo_load, {1: split(gsetup[:20], 2), 2: split(gsetup[20:], 2), 3: gs2}, 3, -1, publish, tail=otail if opt('osched', 1) else None)
stamp()
others = [RING + k * 32 for k in range(3) if RING + k * 32 != PUBR]
def sm(t, e):
    k = t * 2 + e
    if k < 8: return others[k // 4] + (k % 4) * 8
    return [112, 248 - 0][k - 8] if False else (PUBR + (k - 8) * 8)
def ib(t, e): return 120 + (t * 2 + e) * 8
mx = f'v{TMP}'
def owninit(rp, tiles):
    for t in tiles:
        for e in range(2):
            for i in range(8):
                src = accr(i, t, 2 * rp + e)
                if t == 4:
                    E(valu('v_accvgpr_read_b32', f'v{T + i}', src));
            for i in range(8):
                src = accr(i, t, 2 * rp + e) if t < 4 else f'v{T + i}'
                E(valu('v_cndmask_b32', f'v{sm(t, e) + i}', '0', src, sRM))
def ownblock(tiles, lab):
    E(raw(f"s_bitcmp1_b32 {sHG}, 0")); E(raw(f"s_cbranch_scc1 L_ow1{lab}"))
    owninit(0, tiles); E(raw(f"s_branch L_ow2{lab}")); g.label(f'L_ow1{lab}'); owninit(1, tiles); g.label(f'L_ow2{lab}')
g.barrier_hist()
E(valu('v_accvgpr_read_b32', 'v2', f'a{AONE+1}') if False else raw('s_nop 0'))
E(Wait('FL')); E(raw('FLAGCHECK'))
if OWN: ownblock(range(4), 'a')
E(salu('s_mov_b32', sCNT, '0')); E(salu('s_mov_b32', sDONE, '0'))
E(raw("s_mov_b64 exec, 1"))
for t in range(5):
    E(Wait(f'PS{t}'))
    E(bstore(f'a{AONE}', 'v5', sWS, sMYF, off=t * 32, tag='FS', flags=' sc1'))
E(raw("s_mov_b64 exec, -1"))
if OWN: ownblock([4], 'b')
g.barrier_hist()
g.check_pending = False
g.label('L_poll')
E(raw(f"s_sleep {opt('psleep', 6)}"))
E(raw(f"buffer_load_dword {mx}, {vPoll}, {sWS}, {sFLG} offen sc1"))
E(raw("s_waitcnt vmcnt(0)"))
g.label('L_have')
E(raw(f"v_cmp_ne_u32 vcc, 0, {mx}"))
E(raw("s_nop 4"))
E(raw(f"s_mov_b32 {sT3}, 0"))
for k in range(5):
    src = 'vcc_lo' if k < 4 else 'vcc_hi'
    E(raw(f"s_bfe_u32 {sT0}, {src}, {hex((8 << 16) | ((k % 4) * 8))}"))
    E(raw(f"s_cmp_eq_u32 {sT0}, 0xff")); E(raw(f"s_cselect_b32 {sT0}, {1 << k}, 0")); E(raw(f"s_or_b32 {sT3}, {sT3}, {sT0}"))
E(raw(f"s_add_u32 {sCNT}, {sCNT}, 1")); E(raw(f"s_cmp_gt_u32 {sCNT}, 0x40000")); E(raw(f"s_cselect_b32 {sT0}, 31, 0")); E(raw(f"s_or_b32 {sT3}, {sT3}, {sT0}"))
E(raw(f"s_andn2_b32 {sT3}, {sT3}, {sDONE}"))
E(raw("s_cbranch_scc0 L_poll"))
for t in range(5):
    E(raw(f"s_bitcmp1_b32 {sT3}, {t}")); E(raw(f"s_cbranch_scc0 L_gl{t}"))
    E(raw(f"s_add_u32 {sT1}, {sIN}, {t * 4096}"))
    for e in range(2):
        for q in range(2): E(raw(f"buffer_load_dwordx4 {R('v', ib(t, e) + q * 4, 4)}, {vGa[q]}, {sWS}, {sT1} offen offset:{e * 2048} sc1"))
    g.label(f'L_gl{t}')
E(raw(f"buffer_load_dword {mx}, {vPoll}, {sWS}, {sFLG} offen sc1"))
E(raw(f"s_cmp_eq_u32 {sT3}, 31")); E(raw("s_cbranch_scc1 L_gc")); E(raw("s_waitcnt vmcnt(1)")); g.label('L_gc')
def isum(t, e):
    for q in range(2):
        for m in range(4):
            src = f'v{ib(t, e) + q*4 + m}'
            d = sm(t, e) + 2 * m
            if q == 0 and not OWN:
                E(valu('v_lshlrev_b32', f'v{d}', '16', src)); E(valu('v_and_b32', f'v{d+1}', sMASK, src))
            else:
                tm = T + m * 2
                E(valu('v_lshlrev_b32', f'v{tm}', '16', src)); E(valu('v_and_b32', f'v{tm+1}', sMASK, src))
                E(valu('v_pk_add_f32', R('v', d, 2), R('v', d, 2), R('v', tm, 2)))
def swapadd(op, a_, b_):
    for e in range(8): E(valu(op, f'v{a_+e}', f'v{b_+e}'))
    for e in range(0, 8, 2): E(valu('v_pk_add_f32', R('v', a_ + e, 2), R('v', a_ + e, 2), R('v', b_ + e, 2)))
for t in range(5):
    E(raw(f"s_bitcmp1_b32 {sT3}, {t}")); E(raw(f"s_cbranch_scc0 L_gs{t}"))
    E(raw(f"s_waitcnt vmcnt({17 - 4 * t})"))
    isum(t, 0); isum(t, 1)
    swapadd('v_permlane16_swap_b32', sm(t, 0), sm(t, 1))
    g.label(f'L_gs{t}')
E(raw(f"s_or_b32 {sDONE}, {sDONE}, {sT3}"))
E(raw(f"s_cmp_eq_u32 {sDONE}, 31")); E(raw("s_cbranch_scc1 L_fin"))
E(raw("s_waitcnt vmcnt(0)")); E(raw("s_branch L_have"))
g.label('L_fin')
g.barrier_hist()
stamp()
for ta, tb in ((0, 1), (2, 3), (4, None)):
    A_ = sm(ta, 0)
    if tb is None:
        B_ = sm(ta, 1)
        for e in range(8): E(valu('v_mov_b32', f'v{B_ + e}', f'v{A_ + e}'))
    else: B_ = sm(tb, 0)
    swapadd('v_permlane32_swap_b32', A_, B_)
    for m in range(4): E(valu('v_cvt_pk_bf16_f32', f'v{B_ + m}', f'v{A_ + 2*m}', f'v{A_ + 2*m + 1}'))
    E(salu('s_add_u32', sT1, sOUTB, str(ta * 32768)))
    if tb is None: E(raw("s_mov_b64 exec, 0xffffffff"))
    E(bstore(R('v', B_, 4), vOut, sOUT, sT1, tag='OUT'))
E(raw("s_mov_b64 exec, -1"))
if STAMP:
    E(raw("s_waitcnt vmcnt(0)"))
    stamp()
    E(raw(f"s_cmp_lg_u32 {sW}, 0")); E(raw("s_cbranch_scc1 L_end"))
    E(raw("s_mov_b64 exec, 1"))
    E(raw("s_lshl_b32 s96, s2, 7")); E(raw("v_mov_b32 v1, s96"))
    for k in range(stamp_n[0]):
        E(raw(f"v_mov_b32 v2, s{64+2*k}")); E(raw(f"v_mov_b32 v3, s{65+2*k}"))
        E(raw(f"buffer_store_dwordx2 v[2:3], v1, s[24:27], 0 offen offset:{k*8}")); E(raw("s_nop 1"))
    if not STEPS: E(raw(f"v_mov_b32 v2, {sCNT}")); E(raw(f"buffer_store_dwordx2 v[2:3], v1, s[24:27], 0 offen offset:120"))
g.label('L_end')
E(raw('s_endpgm'))
slow = ['L_flagslow:', raw("s_sleep 4"), raw(f"buffer_load_ubyte a{AONE+1}, v5, {sDBG}, {sFL} offen sc1"), raw("s_waitcnt vmcnt(0)"),
 raw(f"s_add_u32 {sCNT}, {sCNT}, 1"), raw(f"s_cmp_lt_u32 {sCNT}, 0x40000"), raw("s_cbranch_scc1 L_flagchk"), raw("s_branch L_flagok")]
new = []
for x in g.out:
    if not isinstance(x, str) and x.text == 'FLAGCHECK':
        new += [raw(f"s_mov_b32 {sCNT}, 0"), 'L_flagchk:', raw(f"v_accvgpr_read_b32 v2, a{AONE+1}"), raw("s_nop 0"), raw(f"v_readfirstlane_b32 {sT2}, v2"), raw("s_nop 3"),
                raw(f"s_cmp_eq_u32 {sT2}, 0"), raw("s_cbranch_scc1 L_flagslow"), 'L_flagok:']
    else: new.append(x)
g.out = new + slow + OOL
nbytes = align8(g)
print("stamps", stamp_n[0], "nops", g.nnop, "instrs", len(g.out), file=sys.stderr)
assert nbytes < 32768 + 128 * 128

K1 = NAME + "_kernel"
txt = f"""; generated by gen7.py
; @launch grid=(256,1,1) block=(256,1,1) lds=163840
.amdgcn_target "amdgcn-amd-amdhsa--gfx950"
.text
.globl {K1}
.p2align 8
.type {K1},@function
{K1}:
{g.text()}
.fill {(49152 + 256 - nbytes) // 4 + 64}, 4, 0xBF800000
.section .rodata,"a"
.p2align 6
.amdhsa_kernel {K1}
  .amdhsa_next_free_vgpr {256+240}
  .amdhsa_next_free_sgpr 102
  .amdhsa_accum_offset 256
  .amdhsa_group_segment_fixed_size 0
  .amdhsa_kernarg_size 104
  .amdhsa_user_sgpr_count 2
  .amdhsa_user_sgpr_kernarg_segment_ptr 1
  .amdhsa_system_sgpr_workgroup_id_x 1
.end_amdhsa_kernel
"""
open(out_path, 'w').write(txt)
```

```python
NAME = "concat_heads__gqa_block_cached__gqa_block_cached__near_ridge"

class Asm:
    def __init__(self):
        self.lines = []
    def __call__(self, s):
        for l in s.strip("\n").split("\n"):
            self.lines.append("    " + l.strip() if not l.strip().endswith(":") else l.strip())
    def label(self, l):
        self.lines.append(l + ":")
    def text(self):
        return "\n".join(self.lines) + "\n"

def header(kname, grid, block, lds):
    return f"""; @launch grid=({grid},1,1) block=({block},1,1) lds={lds}
.amdgcn_target "amdgcn-amd-amdhsa--gfx950"
.text
.globl {kname}
.p2align 8
.type {kname},@function
{kname}:
"""

def footer(kname, vgpr, sgpr, accum):
    return f"""
.section .rodata,"a"
.p2align 6
.amdhsa_kernel {kname}
  .amdhsa_next_free_vgpr {vgpr}
  .amdhsa_next_free_sgpr {sgpr}
  .amdhsa_accum_offset {accum}
  .amdhsa_group_segment_fixed_size 0
  .amdhsa_kernarg_size 104
  .amdhsa_user_sgpr_count 2
  .amdhsa_user_sgpr_kernarg_segment_ptr 1
  .amdhsa_system_sgpr_workgroup_id_x 1
.end_amdhsa_kernel
"""
```

```python
import sys
from fw import *
from asmlib import header, footer
NSL = int(sys.argv[2]); conf = int(sys.argv[3])
g = Gen(); E = g.emit
E(raw("s_cmp_ge_u32 s2, 256")); E(raw("s_cbranch_scc1 L_end"))
for l in f"""s_load_dwordx2 s[4:5], s[0:1], 32
s_load_dwordx2 s[8:9], s[0:1], 72
s_load_dwordx2 s[12:13], s[0:1], 96
s_and_b32 s36, s2, 1
s_lshr_b32 s47, s2, 1
s_and_b32 s47, s47, 3
s_lshr_b32 s48, s2, 3
s_and_b32 s49, s48, 1
s_lshl_b32 s38, s47, 1
s_add_u32 s38, s38, s49
s_lshr_b32 s37, s48, 1
v_lshrrev_b32 v1, 6, v0
v_and_b32 v2, 63, v0
s_nop 0
v_readfirstlane_b32 s39, v1
v_lshrrev_b32 v3, 4, v2
v_and_b32 v4, 15, v2
v_lshlrev_b32 v5, 10, v3
v_lshl_add_u32 v5, v4, 4, v5
v_lshlrev_b32 v6, 4, v2
v_lshrrev_b32 v7, 2, v2
v_and_b32 v9, 7, v7
v_lshlrev_b32 v7, 8, v7
v_and_b32 v8, 3, v2
v_lshl_add_u32 v7, v8, {6 if conf else 3}, v7
v_and_b32 v9, {3 if conf else 7}, v9
v_lshl_add_u32 v7, v9, {4 if conf else 5}, v7
s_waitcnt lgkmcnt(0)
s_cmp_eq_u32 s36, 0
s_cselect_b32 s20, s4, s8
s_cselect_b32 s21, s5, s9
s_mov_b32 s22, 4194304
s_mov_b32 s23, 0x00020000
s_mov_b32 s24, s12
s_mov_b32 s25, s13
s_mov_b32 s26, 268435456
s_mov_b32 s27, 0x00020000
s_lshl_b32 s52, s38, 19
s_lshl_b32 s47, s39, 8
s_add_u32 s52, s52, s47
s_lshl_b32 s47, s37, 15
s_add_u32 s52, s52, s47
s_mul_i32 s53, s39, 20480
s_add_u32 s53, s53, 81920
v_add_u32 v7, s53, v7
v_add_u32 v14, 3072, v5
v_add_u32 v15, 6144, v5
v_add_u32 v16, 9216, v5
v_lshlrev_b32 v12, 4, v0""".split("\n"): E(raw(l))
for i in range(8): E(raw(f"v_xor_b32 v{24+i}, {i * (8 if conf else 32)}, v7"))
for it in range(20):
    E(raw(f"s_mov_b32 s28, {it*4096}")); E(raw("buffer_load_dwordx4 v[20:23], v12, s[20:23], s28 offen")); E(raw("s_waitcnt vmcnt(0)"))
    E(raw("v_add_u32 v13, s28, v12")); E(raw("ds_write_b128 v13, v[20:23]"))
E(raw("s_waitcnt lgkmcnt(0)")); E(raw("s_barrier"))
E(raw("s_mov_b32 s31, 0")); E(raw("s_memrealtime s[40:41]")); E(raw("s_memtime s[54:55]")); E(raw("s_waitcnt lgkmcnt(0)"))
g.label("L_pass")
vD = ['v5', 'v14', 'v15', 'v16']
def dma(h):
    L = [salu('s_xor_b32', 's51', 's52', str(h << 14)), salu('s_add_u32', 'm0', 's53', str((h % NSL) * 4096))]
    for m in range(4): L.append(bload_lds(vD[m], 's[20:23]', 's51', off=m * 1024, tag=f'W{h}'))
    return L
ACC = 48
def af(s, tl): return 40 + (s % 2) * 32 + tl * 4
def areads(h):
    s, hh = divmod(h, 2)
    return [Wait(f'W{h}')] + [dsread(R('a', af(s, tl) + hh * 2, 2), f'v{24+tl}', (h % NSL) * 4096, tag=f'A{h}', op='ds_read_b64_tr_b16') for tl in range(8)]
def breads(s): return [dsread(R('a', (s % 2) * 20 + t * 4, 4), 'v6', (s % 12) * 5120 + t * 1024, tag=f'B{s}') for t in range(5)]
for h in range(NSL): E(dma(h))
E(breads(0)); E(areads(0)); E(areads(1))
nd = NSL
for s in range(16):
    E(Wait(f'A{2*s+1}', f'B{s}'))
    plan = {k: [] for k in range(40)}
    seq = []
    if s == 0: seq += [(0, dma(NSL)), (9, dma(NSL + 1))]; nd = NSL + 2
    fill = []
    if s + 1 < 16:
        fill = breads(s + 1) + areads(2 * s + 2) + [None] * 4 + areads(2 * s + 3)
    pos = 0
    for x in fill:
        if x is not None: plan[pos].append(x)
        pos += 1
    if s + 1 < 16:
        for st, h in ((20, 2 * s + 2), (33, 2 * s + 3)):
            if h + NSL < 32: seq.append((st, [Wait(f'A{h}')] + dma(h + NSL)))
    for st, d in seq:
        plan[st] += d[:-4]
        for m in range(4): plan[min(39, st + 1 + m * (2 if st < 30 else 1))].append(d[-4 + m])
    for k in range(40):
        tl, t = divmod(k, 5)
        E(mfma(R('v', ACC + k * 4, 4), R('a', af(s, tl), 4), R('a', (s % 2) * 20 + t * 4, 4), R('v', ACC + k * 4, 4)))
        E(plan[k])
E(raw("s_barrier")); E(raw("s_memrealtime s[32:33]")); E(raw("s_waitcnt lgkmcnt(0)"))
for p in range(5):
    E(raw(f"s_cmp_eq_u32 s31, {p}")); E(raw(f"s_cselect_b32 s{60+2*p}, s32, s{60+2*p}")); E(raw(f"s_cselect_b32 s{61+2*p}, s33, s{61+2*p}"))
E(raw("s_add_u32 s31, s31, 1")); E(raw("s_cmp_lt_u32 s31, 5")); E(raw("s_cbranch_scc1 L_pass"))
for l in """s_memtime s[56:57]
s_waitcnt lgkmcnt(0)
s_sub_u32 s56, s56, s54
s_subb_u32 s57, s57, s55
v_cmp_eq_u32 vcc, 0, v0
s_and_saveexec_b64 s[34:35], vcc
s_cbranch_execz L_end
s_lshl_b32 s36, s2, 6
v_mov_b32 v1, s36
s_mov_b32 s58, s40
s_mov_b32 s59, s41""".split("\n"): E(raw(l))
for j in range(0, 12, 2):
    E(raw(f"v_mov_b32 v2, s{58+j}")); E(raw(f"v_mov_b32 v3, s{59+j}")); E(raw(f"buffer_store_dwordx2 v[2:3], v1, s[24:27], 0 offen offset:{j*4}")); E(raw("s_nop 1"))
E(raw("v_mov_b32 v2, s56")); E(raw("v_mov_b32 v3, s57")); E(raw("buffer_store_dwordx2 v[2:3], v1, s[24:27], 0 offen offset:56")); E(raw("s_waitcnt vmcnt(0)"))
g.label("L_end"); E(raw("s_endpgm"))
align8(g)
K = "mb_kernel"
open(sys.argv[1], "w").write(header(K, 256, 256, 163840) + g.text() + footer(K, 512, 96, 256))
```
